```python
import torch

def _softmax(x, axis=-1):
    return torch.softmax(x, dim=axis)
def _gelu(x):
    return torch.nn.functional.gelu(x, approximate="tanh")
def _silu(x):
    return torch.nn.functional.silu(x)
def _sigmoid(x):
    return torch.sigmoid(x)
def _layernorm(x, axis=-1, eps=1e-5):
    m = x.mean(dim=axis, keepdim=True)
    v = x.var(dim=axis, keepdim=True, unbiased=False)
    return (x - m) / torch.sqrt(v + eps)
def _scatter_add(tgt, idx, src, axis=0):
    return tgt.clone().index_add_(axis, idx, src)
def _segment_sum(src, seg, n):
    out = torch.zeros((n,) + src.shape[1:], dtype=src.dtype)
    return out.index_add_(0, seg, src)
def _pad(x, pw):
    flat = tuple(v for pair in reversed(pw) for v in pair)
    return torch.nn.functional.pad(x, flat)

kernel_name = 'recurrent_scan__gqa_block_cached__dense_activation_gelu__decode'

def setup_inputs():

    _w = (lambda a: (lambda t: t.to(torch.bfloat16) if t.is_floating_point() else t)(torch.as_tensor(a)))
    def _A_setup():
        B, Sq, D = 8, 1, 512
        Hq, Hkv, Sk, Dh = 32, 8, 4096, 128
        assert Hq % Hkv == 0, (Hq, Hkv)
        return {
            "x": _w((lambda *s: torch.randn(*s, dtype=torch.bfloat16) * 0.05)(B, Sq, D)),
            "k_cache": _w((lambda *s: torch.randn(*s, dtype=torch.bfloat16) * 3.2)(B, Hkv, Sk, Dh)),
            "v_cache": _w((lambda *s: torch.randn(*s, dtype=torch.bfloat16) * 3.2)(B, Hkv, Sk, Dh)),
            "wq": _w((lambda *s: torch.randn(*s, dtype=torch.bfloat16) * 3.2)(D, Hq * Dh) * (D ** -0.5)),
            "wo": _w((lambda *s: torch.randn(*s, dtype=torch.bfloat16) * 3.2)(Hq * Dh, D) * ((Hq * Dh) ** -0.5)),
        }
    _A_in = _A_setup()

    def _B_setup():
        B, S, D, F = 8, 1, 512, 1792
        return {
            "x": _w((lambda *s: torch.randn(*s, dtype=torch.bfloat16) * 0.05)(B, S, D)),
            "w1": _w((lambda *s: torch.randn(*s, dtype=torch.bfloat16) * 3.2)(D, F) * (D ** -0.5)),
            "b1": _w((lambda *s: torch.randn(*s, dtype=torch.bfloat16) * 3.2)(F) * 0.01),
            "w2": _w((lambda *s: torch.randn(*s, dtype=torch.bfloat16) * 0.4)(F, D) * (F ** -0.5)),
            "b2": _w((lambda *s: torch.randn(*s, dtype=torch.bfloat16) * 0.4)(D) * 0.01),
        }
    _B_in = _B_setup()

    return {
        "A_x": _A_in["x"],
        "A_k_cache": _A_in["k_cache"],
        "A_v_cache": _A_in["v_cache"],
        "A_wq": _A_in["wq"],
        "A_wo": _A_in["wo"],
        "B_x": _B_in["x"],
        "B_w1": _B_in["w1"],
        "B_b1": _B_in["b1"],
        "B_w2": _B_in["w2"],
        "B_b2": _B_in["b2"],
    }

def reference(A_x, A_k_cache, A_v_cache, A_wq, A_wo, B_x, B_w1, B_b1, B_w2, B_b2):
    def _A_ref(x, k_cache, v_cache, wq, wo):
        B, Sq, D = x.shape
        Hq, Dh = 32, 128
        Hkv = k_cache.shape[1]
        rep = Hq // Hkv
        q = (lambda x, *d: x.permute(*d))((x @ wq).reshape(B, Sq, Hq, Dh), 0, 2, 1, 3)
        k = (lambda x, n, axis: torch.repeat_interleave(x, n, dim=axis))(k_cache, rep, axis=1)
        v = (lambda x, n, axis: torch.repeat_interleave(x, n, dim=axis))(v_cache, rep, axis=1)
        scores = torch.einsum("bhqd,bhkd->bhqk", q, k) * (Dh ** -0.5)
        p = _softmax(scores, axis=-1)
        o = torch.einsum("bhqk,bhkd->bhqd", p, v)
        return (lambda x, *d: x.permute(*d))(o, 0, 2, 1, 3).reshape(B, Sq, Hq * Dh) @ wo

    def _B_ref(x, w1, b1, w2, b2):
        h = torch.einsum("bsd,df->bsf", x, w1) + b1
        h = _gelu(h)
        return torch.einsum("bsf,fd->bsd", h, w2) + b2

    x = A_x
    xn = _layernorm(x, axis=-1)
    s = _A_ref(xn, A_k_cache, A_v_cache, A_wq, A_wo)
    g = _silu(_B_ref(xn, B_w1, B_b1, B_w2, B_b2))
    return x + s * g
```

```python
import sys
NAME = "recurrent_scan__gqa_block_cached__dense_activation_gelu__decode"
OUT = sys.argv[1] if len(sys.argv) > 1 else "cdna_kernels/%s.s" % NAME

QP = 0x0
HP = 0x80000
SACC = 0xC0000
GACC = 0xC4000
OP = 0x100000
ML = 0x200000
WS_BYTES = 0x210000

L = []
def A(s): L.append("    " + s)
def lab(s): L.append(s + ":")
def nop(n): A("s_nop %d" % n)

HEADER = open("cdna_kernels/%s.s.ref" % NAME).read().split("; Override launch")[0]

def srd(d, lo, hi, nbytes):
    A("s_mov_b32 s%d, s%d" % (d, lo)); A("s_mov_b32 s%d, s%d" % (d+1, hi))
    A("s_mov_b32 s%d, 0x%x" % (d+2, nbytes)); A("s_mov_b32 s%d, 0x00020000" % (d+3))

def bf16r(vd, vs):
    A("v_cvt_pk_bf16_f32 v%d, v%d, v%d" % (vd, vs, vs))
    A("v_lshlrev_b32 v%d, 16, v%d" % (vd, vd))

def kernel_begin(name):
    L.append(".globl %s" % name); L.append(".p2align 8"); L.append(".type %s,@function" % name); lab(name)

KD = []
def kernel_desc(name, vgpr, sgpr=102):
    KD.append(""".amdhsa_kernel %s
  .amdhsa_next_free_vgpr %d
  .amdhsa_next_free_sgpr %d
  .amdhsa_accum_offset %d
  .amdhsa_group_segment_fixed_size 0
  .amdhsa_kernarg_size 104
  .amdhsa_user_sgpr_count 2
  .amdhsa_user_sgpr_kernarg_segment_ptr 1
  .amdhsa_system_sgpr_workgroup_id_x 1
.end_amdhsa_kernel""" % (name, vgpr, sgpr, (vgpr + 3) // 4 * 4))

def wave_sum_all(v, tmp_s):
    A("v_add_f32_dpp v%d, v%d, v%d quad_perm:[1,0,3,2] row_mask:0xf bank_mask:0xf" % (v, v, v)); nop(1)
    A("v_add_f32_dpp v%d, v%d, v%d quad_perm:[2,3,0,1] row_mask:0xf bank_mask:0xf" % (v, v, v)); nop(1)
    A("v_add_f32_dpp v%d, v%d, v%d row_half_mirror row_mask:0xf bank_mask:0xf" % (v, v, v)); nop(1)
    A("v_add_f32_dpp v%d, v%d, v%d row_mirror row_mask:0xf bank_mask:0xf" % (v, v, v)); nop(1)
    for i in range(4): A("v_readlane_b32 s%d, v%d, %d" % (tmp_s + i, v, 16 * i))
    nop(1)
    A("v_mov_b32 v%d, s%d" % (v, tmp_s))
    for i in range(1, 4): A("v_add_f32 v%d, s%d, v%d" % (v, tmp_s + i, v))

def matmul_wave(vld, vperm, vacc, vA, s_sel_lo, s_sel_hi):
    for c in range(8):
        for m in range(4):
            sel = s_sel_lo if c % 2 == 0 else s_sel_hi
            A("v_perm_b32 v%d, v%d, v%d, s%d" % (vperm + 4 * c + m, vld + 4 * (2 * m + 1) + c // 2, vld + 4 * (2 * m) + c // 2, sel))
    nop(1)
    for c in range(8):
        A("v_mfma_f32_16x16x32_bf16 v[%d:%d], v[%d:%d], v[%d:%d], 0" % (vacc + 4 * c, vacc + 4 * c + 3, vA, vA + 3, vperm + 4 * c, vperm + 4 * c + 3))
    nop(7); nop(1)

LOG2E = 0x3fb8aa3b

K1 = NAME + "_k1_kernel"
kernel_begin(K1)
A("s_cmp_ge_u32 s2, 184"); A("s_cbranch_scc1 K1_done")
A("s_load_dwordx2 s[4:5], s[0:1], 0")
A("s_load_dwordx2 s[6:7], s[0:1], 24")
A("s_load_dwordx2 s[10:11], s[0:1], 48")
A("s_load_dwordx2 s[8:9], s[0:1], 96")
A("v_lshrrev_b32 v1, 6, v0"); A("v_and_b32 v2, 63, v0")
nop(0)
A("v_readfirstlane_b32 s3, v1")
A("s_waitcnt lgkmcnt(0)")
srd(12, 4, 5, 8192)
srd(20, 8, 9, WS_BYTES)
A("s_lshl_b32 s24, s3, 11")
A("v_lshlrev_b32 v3, 4, v2")
A("buffer_load_dwordx4 v[8:11], v3, s[12:15], s24 offen")
A("buffer_load_dwordx4 v[12:15], v3, s[12:15], s24 offen offset:1024")
A("s_cmp_ge_u32 s2, 128"); A("s_cbranch_scc1 K1_hsel")
srd(16, 6, 7, 4096 * 512 * 2)
A("s_mov_b32 s25, s2"); A("s_mov_b32 s26, 8192")
A("s_branch K1_sel_done")
lab("K1_hsel")
srd(16, 10, 11, 1792 * 512 * 2)
A("s_sub_u32 s25, s2, 128"); A("s_mov_b32 s26, 3584")
lab("K1_sel_done")
A("s_lshr_b32 s27, s25, 2"); A("s_and_b32 s28, s25, 3")
A("s_lshl_b32 s29, s28, 7"); A("s_lshl_b32 s30, s3, 5"); A("s_add_u32 s29, s29, s30")
A("s_mul_i32 s30, s29, s26"); A("s_lshl_b32 s31, s27, 8"); A("s_add_u32 s30, s30, s31")
A("v_lshrrev_b32 v4, 4, v2"); A("v_lshlrev_b32 v4, 3, v4"); A("v_mul_lo_u32 v4, v4, s26")
A("v_and_b32 v5, 15, v2"); A("v_lshlrev_b32 v5, 4, v5"); A("v_add_u32 v4, v4, v5")
for e in range(8):
    A("buffer_load_dwordx4 v[%d:%d], v4, s[16:19], s30 offen" % (32 + 4 * e, 35 + 4 * e))
    if e < 7: A("s_add_u32 s30, s30, s26")
A("s_cmp_ge_u32 s2, 8"); A("s_cbranch_scc1 K1_nozero")
A("v_mov_b32 v64, 0"); A("v_mov_b32 v65, 0"); A("v_mov_b32 v66, 0"); A("v_mov_b32 v67, 0")
A("s_lshl_b32 s31, s2, 12"); A("s_add_u32 s31, s31, 0x%x" % SACC)
A("v_lshlrev_b32 v5, 4, v0")
A("buffer_store_dwordx4 v[64:67], v5, s[20:23], s31 offen")
lab("K1_nozero")
A("s_waitcnt vmcnt(8)")
A("s_waitcnt vmcnt(0)") if False else None
L.pop() if False else None
def ln_row(src, f, out_lds_off):
    for i in range(4):
        A("v_lshlrev_b32 v%d, 16, v%d" % (f + 2 * i, src + i))
        A("v_and_b32 v%d, 0xffff0000, v%d" % (f + 2 * i + 1, src + i))
    A("v_add_f32 v90, v%d, v%d" % (f, f + 1))
    for i in range(2, 8): A("v_add_f32 v90, v90, v%d" % (f + i))
    nop(1)
    wave_sum_all(90, 40)
    A("v_mul_f32 v90, 0x3b000000, v90")
    A("v_mov_b32 v91, 0")
    for i in range(8):
        A("v_sub_f32 v92, v%d, v90" % (f + i)); A("v_fmac_f32 v91, v92, v92")
    nop(1)
    wave_sum_all(91, 40)
    A("v_mul_f32 v91, 0x3b000000, v91")
    bf16r(90, 90); bf16r(91, 91)
    A("v_add_f32 v91, 0x3727c5ac, v91")
    bf16r(91, 91)
    A("v_sqrt_f32 v91, v91"); nop(0)
    bf16r(91, 91)
    A("v_rcp_f32 v93, v91"); nop(0)
    A("v_fma_f32 v94, -v91, v93, 1.0"); A("v_fma_f32 v93, v94, v93, v93")
    for i in range(8):
        A("v_sub_f32 v92, v%d, v90" % (f + i)); bf16r(92, 92)
        A("v_mul_f32 v95, v92, v93")
        A("v_fma_f32 v96, -v95, v91, v92"); A("v_fma_f32 v%d, v96, v93, v95" % (f + i))
    for i in range(4):
        A("v_cvt_pk_bf16_f32 v%d, v%d, v%d" % (src + i, f + 2 * i, f + 2 * i + 1))
    nop(0)
    A("ds_write_b128 v97, v[%d:%d] offset:%d" % (src, src + 3, out_lds_off))
A("v_lshlrev_b32 v97, 4, v2"); A("v_mov_b32 v98, s24"); A("v_add_u32 v97, v97, v98")
A("s_waitcnt vmcnt(8)")
A("s_cmp_ge_u32 s2, 8"); A("s_cbranch_scc1 K1_w_ok"); A("s_waitcnt vmcnt(9)"); lab("K1_w_ok")
ln_row(8, 72, 0)
ln_row(12, 80, 1024)
A("s_waitcnt lgkmcnt(0)"); A("s_barrier")
A("v_and_b32 v5, 7, v2"); A("v_lshlrev_b32 v5, 10, v5")
A("v_lshrrev_b32 v6, 4, v2"); A("v_lshlrev_b32 v6, 4, v6"); A("v_add_u32 v5, v5, v6")
A("s_lshl_b32 s31, s29, 1"); A("v_add_u32 v5, s31, v5")
A("ds_read_b128 v[8:11], v5")
A("s_mov_b32 s32, 0x05040100"); A("s_mov_b32 s33, 0x07060302")
A("s_waitcnt vmcnt(0) lgkmcnt(0)")
matmul_wave(32, 64, 96, 8, 32, 33)
A("v_lshrrev_b32 v5, 4, v2"); A("v_lshlrev_b32 v5, 11, v5")
A("v_and_b32 v6, 15, v2"); A("v_lshlrev_b32 v6, 5, v6"); A("v_add_u32 v5, v5, v6")
A("s_lshl_b32 s31, s3, 12"); A("s_add_u32 s31, s31, 8192"); A("v_add_u32 v5, s31, v5")
A("v_cmp_gt_u32 vcc, 32, v2"); A("s_and_saveexec_b64 s[34:35], vcc")
for c in range(8):
    for r in range(4):
        A("ds_write_b32 v5, v%d offset:%d" % (96 + 4 * c + r, r * 512 + c * 4))
A("s_mov_b64 exec, s[34:35]")
A("s_waitcnt lgkmcnt(0)"); A("s_barrier")
A("v_lshlrev_b32 v5, 4, v0")
for w in range(4): A("ds_read_b128 v[%d:%d], v5 offset:%d" % (8 + 4 * w, 11 + 4 * w, 8192 + 4096 * w))
A("s_waitcnt lgkmcnt(0)")
for i in range(4):
    A("v_add_f32 v%d, v%d, v%d" % (8 + i, 8 + i, 12 + i)); A("v_add_f32 v%d, v%d, v%d" % (16 + i, 16 + i, 20 + i)); A("v_add_f32 v%d, v%d, v%d" % (8 + i, 8 + i, 16 + i))
A("s_cmp_ge_u32 s2, 128"); A("s_cbranch_scc1 K1_hst")
A("s_mov_b32 s36, 16384"); A("s_mov_b32 s37, 0x%x" % QP); A("s_branch K1_st")
lab("K1_hst")
A("s_mov_b32 s36, 7168"); A("s_mov_b32 s37, 0x%x" % HP)
lab("K1_st")
A("s_lshl_b32 s38, s36, 3"); A("s_mul_i32 s38, s38, s28"); A("s_add_u32 s37, s37, s38")
A("s_lshl_b32 s38, s27, 9"); A("s_add_u32 s37, s37, s38")
A("v_lshrrev_b32 v5, 5, v0"); A("v_mul_lo_u32 v5, v5, s36")
A("v_and_b32 v6, 31, v0"); A("v_lshlrev_b32 v6, 4, v6"); A("v_add_u32 v5, v5, v6")
A("buffer_store_dwordx4 v[8:11], v5, s[20:23], s37 offen")
lab("K1_done")
A("s_endpgm")
kernel_desc(K1, 128)

K2 = NAME + "_k2_kernel"
W = 24
VW = 100
VS = 32
VQ = 16
VP = 64
VACC = 200
VPK = 232
kernel_begin(K2)
A("s_cmp_ge_u32 s2, 512"); A("s_cbranch_scc1 K2_done")
A("s_load_dwordx2 s[4:5], s[0:1], 8")
A("s_load_dwordx2 s[6:7], s[0:1], 16")
A("s_load_dwordx2 s[8:9], s[0:1], 96")
A("v_lshrrev_b32 v1, 6, v0"); A("v_and_b32 v2, 63, v0"); nop(0)
A("v_readfirstlane_b32 s3, v1")
A("s_waitcnt lgkmcnt(0)")
srd(12, 4, 5, 0x4000000); srd(16, 6, 7, 0x4000000); srd(20, 8, 9, WS_BYTES)
A("s_lshr_b32 s24, s2, 3"); A("s_and_b32 s25, s2, 7")
A("s_lshl_b32 s26, s24, 20"); A("s_lshl_b32 s27, s25, 17"); A("s_add_u32 s26, s26, s27")
A("s_lshl_b32 s27, s3, 15"); A("s_add_u32 s26, s26, s27")
A("s_lshr_b32 s28, s24, 3"); A("s_and_b32 s29, s24, 7")
A("s_lshl_b32 s30, s28, 14"); A("s_lshl_b32 s31, s29, 11"); A("s_add_u32 s30, s30, s31")
A("v_lshlrev_b32 v3, 3, v0")
for ks in range(4):
    A("buffer_load_dwordx2 v[%d:%d], v3, s[20:23], s30 offen" % (4 + 2 * ks, 5 + 2 * ks))
    if ks < 3: A("s_add_u32 s30, s30, 131072")
A("v_and_b32 v12, 15, v2"); A("v_lshrrev_b32 v13, 4, v2")
A("v_lshlrev_b32 v14, 8, v12"); A("v_lshl_add_u32 v14, v13, 4, v14")
A("v_lshlrev_b32 v15, 10, v13"); A("v_lshl_add_u32 v15, v12, 4, v15")
A("s_mov_b32 s32, s26")
A("s_mov_b32 s33, s26"); A("s_add_u32 s34, s26, 4096")
loads = [("K", t, i) for t in range(8) for i in range(4)] + [("V", g, e) for g in range(4) for e in range(8)]
def issue(j):
    kind, a, b = loads[j]
    r = VW + 4 * (j % W)
    if kind == "K":
        A("buffer_load_dwordx4 v[%d:%d], v14, s[12:15], s32 offen offset:%d" % (r, r + 3, 64 * b))
        if b == 3: A("s_add_u32 s32, s32, 4096")
    else:
        A("buffer_load_dwordx4 v[%d:%d], v15, s[16:19], s%d offen offset:%d" % (r, r + 3, 33 if b < 4 else 34, 256 * (b & 3)))
        if b == 7: A("s_add_u32 s33, s33, 8192"); A("s_add_u32 s34, s34, 8192")
for j in range(W): issue(j)
nissued = W
A("s_waitcnt vmcnt(%d)" % W)
A("v_add_f32 v4, v4, v6"); A("v_add_f32 v5, v5, v7"); A("v_add_f32 v8, v8, v10"); A("v_add_f32 v9, v9, v11")
A("v_add_f32 v4, v4, v8"); A("v_add_f32 v5, v5, v9")
A("v_cvt_pk_bf16_f32 v4, v4, v5"); A("v_lshlrev_b32 v5, 2, v0")
A("ds_write_b32 v5, v4")
for i in range(16): A("v_mov_b32 v%d, 0" % (VQ + i))
A("v_lshlrev_b32 v5, 8, v12"); A("v_lshl_add_u32 v5, v13, 4, v5")
A("s_waitcnt lgkmcnt(0)"); A("s_barrier")
A("v_cmp_gt_u32 vcc, 4, v12"); A("s_and_saveexec_b64 s[36:37], vcc")
for i in range(4): A("ds_read_b128 v[%d:%d], v5 offset:%d" % (VQ + 4 * i, VQ + 4 * i + 3, 64 * i))
A("s_mov_b64 exec, s[36:37]")
A("s_waitcnt lgkmcnt(0)")
consumed = 0
for t in range(8):
    consumed += 4
    A("s_waitcnt vmcnt(%d)" % (nissued - consumed))
    for i in range(4):
        r = VW + 4 * ((4 * t + i) % W)
        A("v_mfma_f32_16x16x32_bf16 v[%d:%d], v[%d:%d], v[%d:%d], %s" % (VS + 4 * t, VS + 4 * t + 3, r, r + 3, VQ + 4 * i, VQ + 4 * i + 3, "0" if i == 0 else "v[%d:%d]" % (VS + 4 * t, VS + 4 * t + 3)))
    for _ in range(4):
        if nissued < len(loads): issue(nissued); nissued += 1
nop(7); nop(1)
A("s_mov_b32 s38, 0x3db504f3")
for i in range(0, 32, 2):
    a, b = VS + i, VS + i + 1
    A("v_cvt_pk_bf16_f32 v4, v%d, v%d" % (a, b))
    A("v_lshlrev_b32 v%d, 16, v4" % a); A("v_and_b32 v%d, 0xffff0000, v4" % b)
    A("v_mul_f32 v%d, s38, v%d" % (a, a)); A("v_mul_f32 v%d, s38, v%d" % (b, b))
    A("v_cvt_pk_bf16_f32 v4, v%d, v%d" % (a, b))
    A("v_lshlrev_b32 v%d, 16, v4" % a); A("v_and_b32 v%d, 0xffff0000, v4" % b)
A("v_max_f32 v4, v%d, v%d" % (VS, VS + 1))
for i in range(2, 32, 2): A("v_max3_f32 v4, v4, v%d, v%d" % (VS + i, VS + i + 1))
A("v_xor_b32 v5, 16, v2"); A("v_lshlrev_b32 v5, 2, v5"); A("v_xor_b32 v6, 32, v2"); A("v_lshlrev_b32 v6, 2, v6")
A("ds_bpermute_b32 v7, v5, v4"); A("s_waitcnt lgkmcnt(0)"); A("v_max_f32 v4, v4, v7")
A("ds_bpermute_b32 v7, v6, v4"); A("s_waitcnt lgkmcnt(0)"); A("v_max_f32 v4, v4, v7")
A("v_mov_b32 v8, 0")
for i in range(32):
    A("v_sub_f32 v%d, v%d, v4" % (VS + i, VS + i)); A("v_mul_f32 v%d, 0x%x, v%d" % (VS + i, LOG2E, VS + i))
    A("v_exp_f32 v%d, v%d" % (VS + i, VS + i)); nop(0)
    A("v_add_f32 v8, v8, v%d" % (VS + i))
for i in range(16): A("v_cvt_pk_bf16_f32 v%d, v%d, v%d" % (VPK + i, VS + 2 * i, VS + 2 * i + 1))
A("ds_bpermute_b32 v7, v5, v8"); A("s_waitcnt lgkmcnt(0)"); A("v_add_f32 v8, v8, v7")
A("ds_bpermute_b32 v7, v6, v8"); A("s_waitcnt lgkmcnt(0)"); A("v_add_f32 v8, v8, v7")
A("s_mov_b32 s40, 0x05040100"); A("s_mov_b32 s41, 0x07060302")
for g in range(4):
    consumed += 8
    A("s_waitcnt vmcnt(%d)" % (nissued - consumed))
    base = 32 + 8 * g
    for c in range(8):
        for m in range(4):
            r0 = VW + 4 * ((base + 2 * m) % W) + c // 2; r1 = VW + 4 * ((base + 2 * m + 1) % W) + c // 2
            A("v_perm_b32 v%d, v%d, v%d, s%d" % (VP + 4 * c + m, r1, r0, 40 if c % 2 == 0 else 41))
    for _ in range(8):
        if nissued < len(loads): issue(nissued); nissued += 1
    nop(1)
    for c in range(8):
        A("v_mfma_f32_16x16x32_bf16 v[%d:%d], v[%d:%d], v[%d:%d], %s" % (VACC + 4 * c, VACC + 4 * c + 3, VPK + 4 * g, VPK + 4 * g + 3, VP + 4 * c, VP + 4 * c + 3, "0" if g == 0 else "v[%d:%d]" % (VACC + 4 * c, VACC + 4 * c + 3)))
    nop(3)
nop(7); nop(1)
A("s_lshl_b32 s42, s3, 11"); A("s_add_u32 s42, s42, 1024")
A("v_lshlrev_b32 v9, 5, v2"); A("v_add_u32 v9, s42, v9")
A("v_cmp_gt_u32 vcc, 16, v2"); A("s_and_saveexec_b64 s[36:37], vcc")
for c in range(8):
    for r in range(4):
        A("ds_write_b32 v9, v%d offset:%d" % (VACC + 4 * c + r, r * 512 + c * 4))
A("s_mov_b64 exec, s[36:37]")
A("s_lshl_b32 s42, s3, 4"); A("s_add_u32 s42, s42, 9216")
A("v_lshlrev_b32 v9, 2, v2"); A("v_add_u32 v9, s42, v9")
A("v_cmp_gt_u32 vcc, 4, v2"); A("s_and_saveexec_b64 s[36:37], vcc")
A("ds_write_b32 v9, v4"); A("ds_write_b32 v9, v8 offset:64")
A("s_mov_b64 exec, s[36:37]")
A("s_waitcnt lgkmcnt(0)"); A("s_barrier")
A("v_lshlrev_b32 v9, 2, v1")
for w in range(4):
    A("ds_read_b32 v%d, v9 offset:%d" % (20 + w, 9216 + 16 * w)); A("ds_read_b32 v%d, v9 offset:%d" % (24 + w, 9280 + 16 * w))
A("v_lshlrev_b32 v10, 9, v1"); A("v_lshl_add_u32 v10, v2, 3, v10")
for w in range(4): A("ds_read_b64 v[%d:%d], v10 offset:%d" % (28 + 2 * w, 29 + 2 * w, 1024 + 2048 * w))
A("s_waitcnt lgkmcnt(0)")
A("v_max_f32 v4, v20, v21"); A("v_max3_f32 v4, v4, v22, v23")
A("v_mov_b32 v8, 0"); A("v_mov_b32 v16, 0"); A("v_mov_b32 v17, 0")
for w in range(4):
    A("v_sub_f32 v11, v%d, v4" % (20 + w)); A("v_mul_f32 v11, 0x%x, v11" % LOG2E); A("v_exp_f32 v11, v11"); nop(0)
    A("v_fmac_f32 v8, v11, v%d" % (24 + w)); A("v_fmac_f32 v16, v11, v%d" % (28 + 2 * w)); A("v_fmac_f32 v17, v11, v%d" % (29 + 2 * w))
A("s_lshl_b32 s42, s2, 11"); A("s_add_u32 s42, s42, 0x%x" % OP)
A("buffer_store_dwordx2 v[16:17], v3, s[20:23], s42 offen")
A("v_mov_b32 v5, v8")
A("s_lshl_b32 s42, s2, 5"); A("s_add_u32 s42, s42, 0x%x" % ML)
A("v_lshlrev_b32 v9, 3, v1")
A("v_cmp_eq_u32 vcc, 0, v2"); A("s_and_saveexec_b64 s[36:37], vcc")
A("buffer_store_dwordx2 v[4:5], v9, s[20:23], s42 offen")
A("s_mov_b64 exec, s[36:37]")
lab("K2_done")
A("s_endpgm")
kernel_desc(K2, 248)

K3 = NAME + "_k3_kernel"
kernel_begin(K3)
A("s_cmp_ge_u32 s2, 184"); A("s_cbranch_scc1 K3_done")
A("s_load_dwordx2 s[4:5], s[0:1], 32")
A("s_load_dwordx2 s[6:7], s[0:1], 64")
A("s_load_dwordx2 s[10:11], s[0:1], 56")
A("s_load_dwordx2 s[8:9], s[0:1], 96")
A("v_lshrrev_b32 v1, 6, v0"); A("v_and_b32 v2, 63, v0"); nop(0)
A("v_readfirstlane_b32 s3, v1")
A("s_waitcnt lgkmcnt(0)")
srd(20, 8, 9, WS_BYTES)
A("s_cmp_ge_u32 s2, 128"); A("s_cbranch_scc1 K3_fsel")
srd(16, 4, 5, 4096 * 512 * 2); A("s_mov_b32 s25, s2"); A("s_mov_b32 s44, 0x%x" % SACC)
A("s_branch K3_sel_done")
lab("K3_fsel")
srd(16, 6, 7, 1792 * 512 * 2); A("s_sub_u32 s25, s2, 128"); A("s_mov_b32 s44, 0x%x" % GACC)
lab("K3_sel_done")
A("s_lshr_b32 s27, s25, 2"); A("s_and_b32 s28, s25, 3")
A("s_lshl_b32 s29, s27, 7"); A("s_lshl_b32 s30, s3, 5"); A("s_add_u32 s29, s29, s30")
A("s_lshl_b32 s30, s29, 10"); A("s_lshl_b32 s31, s28, 8"); A("s_add_u32 s30, s30, s31")
A("v_lshrrev_b32 v4, 4, v2"); A("v_lshlrev_b32 v4, 13, v4")
A("v_and_b32 v5, 15, v2"); A("v_lshlrev_b32 v5, 4, v5"); A("v_add_u32 v4, v4, v5")
for e in range(8):
    A("buffer_load_dwordx4 v[%d:%d], v4, s[16:19], s30 offen" % (32 + 4 * e, 35 + 4 * e))
    if e < 7: A("s_add_u32 s30, s30, 1024")
A("v_lshrrev_b32 v6, 5, v0"); A("v_and_b32 v7, 31, v0")
A("s_cmp_ge_u32 s2, 128"); A("s_cbranch_scc1 K3_fpre")
A("s_lshr_b32 s31, s27, 2"); A("s_and_b32 s32, s27, 3")
A("s_lshl_b32 s33, s31, 14"); A("s_lshl_b32 s34, s32, 9"); A("s_add_u32 s33, s33, s34"); A("s_add_u32 s33, s33, 0x%x" % OP)
A("v_lshlrev_b32 v8, 17, v6"); A("v_lshl_add_u32 v8, v7, 4, v8")
for s in range(8): A("buffer_load_dwordx4 v[%d:%d], v8, s[20:23], s33 offen offset:%d" % (96 + 4 * s, 99 + 4 * s, 2048 * s) if s < 2 else "s_nop 0")
L[:] = [x for x in L]
for s in range(2, 8):
    pass
A("s_add_u32 s34, s33, 4096")
for s in range(2, 8):
    if s % 2 == 0 and s > 2: A("s_add_u32 s34, s34, 4096")
    A("buffer_load_dwordx4 v[%d:%d], v8, s[20:23], s34 offen offset:%d" % (96 + 4 * s, 99 + 4 * s, 2048 * (s % 2)))
A("s_lshl_b32 s33, s31, 8"); A("s_lshl_b32 s34, s32, 3"); A("s_add_u32 s33, s33, s34"); A("s_add_u32 s33, s33, 0x%x" % ML)
A("v_lshlrev_b32 v9, 11, v6")
for s in range(8): A("buffer_load_dwordx2 v[%d:%d], v9, s[20:23], s33 offen offset:%d" % (128 + 2 * s, 129 + 2 * s, 32 * s))
A("s_waitcnt vmcnt(0)")
A("v_max_f32 v10, v128, v130")
for s in range(2, 8, 2): A("v_max3_f32 v10, v10, v%d, v%d" % (128 + 2 * s, 130 + 2 * s))
A("v_mov_b32 v11, 0")
for i in range(4): A("v_mov_b32 v%d, 0" % (12 + i))
for s in range(8):
    A("v_sub_f32 v16, v%d, v10" % (128 + 2 * s)); A("v_mul_f32 v16, 0x%x, v16" % LOG2E); A("v_exp_f32 v16, v16"); nop(0)
    A("v_fmac_f32 v11, v16, v%d" % (129 + 2 * s))
    for i in range(4): A("v_fmac_f32 v%d, v16, v%d" % (12 + i, 96 + 4 * s + i))
A("v_rcp_f32 v16, v11"); nop(0)
A("v_fma_f32 v17, -v11, v16, 1.0"); A("v_fma_f32 v16, v17, v16, v16")
for i in range(4): A("v_mul_f32 v%d, v%d, v16" % (12 + i, 12 + i))
A("s_branch K3_pre_done")
lab("K3_fpre")
srd(12, 10, 11, 3584)
A("s_mov_b32 s36, 7168"); A("v_mul_lo_u32 v8, v6, s36"); A("v_lshl_add_u32 v8, v7, 4, v8")
A("s_lshl_b32 s33, s27, 9"); A("s_add_u32 s33, s33, 0x%x" % HP)
for ks in range(4):
    A("buffer_load_dwordx4 v[%d:%d], v8, s[20:23], s33 offen" % (96 + 4 * ks, 99 + 4 * ks))
    if ks < 3: A("s_add_u32 s33, s33, 57344")
A("v_lshlrev_b32 v9, 3, v7"); A("s_lshl_b32 s33, s27, 8")
A("buffer_load_dwordx2 v[112:113], v9, s[12:15], s33 offen")
A("s_waitcnt vmcnt(0)")
A("v_lshlrev_b32 v114, 16, v112"); A("v_and_b32 v115, 0xffff0000, v112"); A("v_lshlrev_b32 v116, 16, v113"); A("v_and_b32 v117, 0xffff0000, v113")
for i in range(4):
    A("v_add_f32 v%d, v%d, v%d" % (96 + i, 96 + i, 100 + i)); A("v_add_f32 v%d, v%d, v%d" % (104 + i, 104 + i, 108 + i)); A("v_add_f32 v%d, v%d, v%d" % (12 + i, 96 + i, 104 + i))
    bf16r(12 + i, 12 + i)
    A("v_add_f32 v%d, v%d, v%d" % (12 + i, 12 + i, 114 + i)); bf16r(12 + i, 12 + i)
    x = 12 + i
    A("v_mul_f32 v16, v%d, v%d" % (x, x)); A("v_mul_f32 v16, v16, v%d" % x)
    A("v_mov_b32 v17, 0x3d372713"); A("v_fma_f32 v16, v16, v17, v%d" % x)
    A("v_mul_f32 v16, 0x3f4c422a, v16")
    A("v_mul_f32 v16, 0x4038aa3b, v16")
    A("v_exp_f32 v16, v16"); nop(0)
    A("v_add_f32 v16, 1.0, v16"); A("v_rcp_f32 v16, v16"); nop(0)
    A("v_fma_f32 v16, v16, -2.0, 1.0")
    A("v_add_f32 v16, 1.0, v16"); A("v_mul_f32 v16, 0.5, v16"); A("v_mul_f32 v%d, v%d, v16" % (x, x))
lab("K3_pre_done")
A("v_cvt_pk_bf16_f32 v12, v12, v13"); A("v_cvt_pk_bf16_f32 v13, v14, v15")
A("v_lshlrev_b32 v8, 8, v6"); A("v_lshl_add_u32 v8, v7, 3, v8")
A("ds_write_b64 v8, v[12:13]")
A("s_waitcnt lgkmcnt(0)"); A("s_barrier")
A("v_and_b32 v5, 7, v2"); A("v_lshlrev_b32 v5, 8, v5")
A("v_lshrrev_b32 v8, 4, v2"); A("v_lshlrev_b32 v8, 4, v8"); A("v_add_u32 v5, v5, v8")
A("s_lshl_b32 s31, s3, 6"); A("v_add_u32 v5, s31, v5")
A("ds_read_b128 v[8:11], v5")
A("s_mov_b32 s32, 0x05040100"); A("s_mov_b32 s33, 0x07060302")
A("s_waitcnt vmcnt(0) lgkmcnt(0)")
matmul_wave(32, 64, 96, 8, 32, 33)
A("v_lshrrev_b32 v5, 4, v2"); A("v_lshlrev_b32 v5, 11, v5")
A("v_and_b32 v8, 15, v2"); A("v_lshlrev_b32 v8, 5, v8"); A("v_add_u32 v5, v5, v8")
A("s_lshl_b32 s31, s3, 12"); A("s_add_u32 s31, s31, 8192"); A("v_add_u32 v5, s31, v5")
A("v_cmp_gt_u32 vcc, 32, v2"); A("s_and_saveexec_b64 s[34:35], vcc")
for c in range(8):
    for r in range(4):
        A("ds_write_b32 v5, v%d offset:%d" % (96 + 4 * c + r, r * 512 + c * 4))
A("s_mov_b64 exec, s[34:35]")
A("s_waitcnt lgkmcnt(0)"); A("s_barrier")
A("v_lshlrev_b32 v5, 2, v0")
for q in range(4):
    for w in range(4): A("ds_read_b32 v%d, v5 offset:%d" % (16 + 4 * q + w, 8192 + 4096 * w + 1024 * q))
A("s_waitcnt lgkmcnt(0)")
A("v_lshrrev_b32 v8, 7, v0"); A("v_lshlrev_b32 v8, 11, v8"); A("v_and_b32 v9, 127, v0"); A("v_lshl_add_u32 v8, v9, 2, v8")
A("s_lshl_b32 s31, s28, 9"); A("s_add_u32 s31, s31, s44")
for q in range(4):
    b = 16 + 4 * q
    A("v_add_f32 v%d, v%d, v%d" % (b, b, b + 1)); A("v_add_f32 v%d, v%d, v%d" % (b + 2, b + 2, b + 3)); A("v_add_f32 v%d, v%d, v%d" % (b, b, b + 2))
    A("buffer_atomic_add_f32 v%d, v8, s[20:23], s31 offen offset:%d" % (b, 0))
    if q < 3: A("s_add_u32 s31, s31, 4096")
lab("K3_done")
A("s_endpgm")
kernel_desc(K3, 144)

K4 = NAME + "_k4_kernel"
kernel_begin(K4)
A("s_cmp_ge_u32 s2, 16"); A("s_cbranch_scc1 K4_done")
A("s_load_dwordx2 s[4:5], s[0:1], 0")
A("s_load_dwordx2 s[6:7], s[0:1], 72")
A("s_load_dwordx2 s[10:11], s[0:1], 80")
A("s_load_dwordx2 s[8:9], s[0:1], 96")
A("s_waitcnt lgkmcnt(0)")
srd(12, 4, 5, 8192); srd(16, 6, 7, 1024); srd(20, 8, 9, WS_BYTES); srd(24, 10, 11, 8192)
A("s_lshl_b32 s3, s2, 8"); A("v_add_u32 v1, s3, v0")
A("v_lshlrev_b32 v2, 1, v1"); A("v_lshlrev_b32 v3, 2, v1"); A("v_and_b32 v4, 511, v1"); A("v_lshlrev_b32 v4, 1, v4")
A("buffer_load_ushort v5, v2, s[12:15], 0 offen")
A("buffer_load_ushort v6, v4, s[16:19], 0 offen")
A("s_mov_b32 s28, 0x%x" % SACC); A("s_mov_b32 s29, 0x%x" % GACC)
A("buffer_load_dword v7, v3, s[20:23], s28 offen")
A("buffer_load_dword v8, v3, s[20:23], s29 offen")
A("s_waitcnt vmcnt(0)")
A("v_lshlrev_b32 v5, 16, v5"); A("v_lshlrev_b32 v6, 16, v6")
bf16r(7, 7); bf16r(8, 8)
A("v_add_f32 v8, v8, v6"); bf16r(8, 8)
A("v_mul_f32 v9, 0xbfb8aa3b, v8"); A("v_exp_f32 v9, v9"); nop(0)
A("v_add_f32 v9, 1.0, v9"); A("v_rcp_f32 v10, v9"); nop(0)
A("v_fma_f32 v11, -v9, v10, 1.0"); A("v_fma_f32 v10, v11, v10, v10")
A("v_mul_f32 v8, v8, v10"); bf16r(8, 8)
A("v_mul_f32 v7, v7, v8"); bf16r(7, 7)
A("v_add_f32 v5, v5, v7")
A("v_cvt_pk_bf16_f32 v5, v5, v5")
A("buffer_store_short v5, v2, s[24:27], 0 offen")
lab("K4_done")
A("s_endpgm")
kernel_desc(K4, 32)

L = [x for x in L if x is not None]
launch = """; @launch kernel=%s grid=(184,1,1) block=(256,1,1) lds=24576
; @launch kernel=%s grid=(512,1,1) block=(256,1,1) lds=9472
; @launch kernel=%s grid=(184,1,1) block=(256,1,1) lds=24576
; @launch kernel=%s grid=(16,1,1) block=(256,1,1) lds=0
""" % (K1, K2, K3, K4)
txt = HEADER + launch + '.amdgcn_target "amdgcn-amd-amdhsa--gfx950"\n.text\n' + "\n".join(L) + '\n.section .rodata,"a"\n.p2align 6\n' + "\n.p2align 6\n".join(KD) + "\n"
open(OUT, "w").write(txt)
print("wrote", OUT, len(txt))
```

```python
import sys
NAME = "recurrent_scan__gqa_block_cached__dense_activation_gelu__decode"
OUT = sys.argv[1] if len(sys.argv) > 1 else "cdna_kernels/%s.s" % NAME

QP = 0x0
HP = 0x80000
SACC = 0xC0000
GACC = 0xC4000
OP = 0x100000
ML = 0x200000
WS_BYTES = 0x210000

L = []
def A(s): L.append("    " + s)
def lab(s): L.append(s + ":")
def nop(n): A("s_nop %d" % n)

HEADER = open("cdna_kernels/%s.s.ref" % NAME).read().split("; Override launch")[0]

def srd(d, lo, hi, nbytes):
    A("s_mov_b32 s%d, s%d" % (d, lo)); A("s_mov_b32 s%d, s%d" % (d+1, hi))
    A("s_mov_b32 s%d, 0x%x" % (d+2, nbytes)); A("s_mov_b32 s%d, 0x00020000" % (d+3))

def bf16r(vd, vs):
    A("v_cvt_pk_bf16_f32 v%d, v%d, v%d" % (vd, vs, vs))
    A("v_lshlrev_b32 v%d, 16, v%d" % (vd, vd))

def kernel_begin(name):
    L.append(".globl %s" % name); L.append(".p2align 8"); L.append(".type %s,@function" % name); lab(name)

KD = []
def kernel_desc(name, vgpr, sgpr=102):
    KD.append(""".amdhsa_kernel %s
  .amdhsa_next_free_vgpr %d
  .amdhsa_next_free_sgpr %d
  .amdhsa_accum_offset %d
  .amdhsa_group_segment_fixed_size 0
  .amdhsa_kernarg_size 104
  .amdhsa_user_sgpr_count 2
  .amdhsa_user_sgpr_kernarg_segment_ptr 1
  .amdhsa_system_sgpr_workgroup_id_x 1
.end_amdhsa_kernel""" % (name, vgpr, sgpr, (vgpr + 3) // 4 * 4))

def wave_sum_all(v, tmp_s):
    A("v_add_f32_dpp v%d, v%d, v%d quad_perm:[1,0,3,2] row_mask:0xf bank_mask:0xf" % (v, v, v)); nop(1)
    A("v_add_f32_dpp v%d, v%d, v%d quad_perm:[2,3,0,1] row_mask:0xf bank_mask:0xf" % (v, v, v)); nop(1)
    A("v_add_f32_dpp v%d, v%d, v%d row_half_mirror row_mask:0xf bank_mask:0xf" % (v, v, v)); nop(1)
    A("v_add_f32_dpp v%d, v%d, v%d row_mirror row_mask:0xf bank_mask:0xf" % (v, v, v)); nop(1)
    for i in range(4): A("v_readlane_b32 s%d, v%d, %d" % (tmp_s + i, v, 16 * i))
    nop(1)
    A("v_mov_b32 v%d, s%d" % (v, tmp_s))
    for i in range(1, 4): A("v_add_f32 v%d, s%d, v%d" % (v, tmp_s + i, v))

def matmul_wave(vld, vperm, vacc, vA, s_sel_lo, s_sel_hi):
    for c in range(8):
        for m in range(4):
            sel = s_sel_lo if c % 2 == 0 else s_sel_hi
            A("v_perm_b32 v%d, v%d, v%d, s%d" % (vperm + 4 * c + m, vld + 4 * (2 * m + 1) + c // 2, vld + 4 * (2 * m) + c // 2, sel))
    nop(1)
    for c in range(8):
        A("v_mfma_f32_16x16x32_bf16 v[%d:%d], v[%d:%d], v[%d:%d], 0" % (vacc + 4 * c, vacc + 4 * c + 3, vA, vA + 3, vperm + 4 * c, vperm + 4 * c + 3))
    nop(7); nop(1)

LOG2E = 0x3fb8aa3b

K1 = NAME + "_k1_kernel"
kernel_begin(K1)
A("s_cmp_ge_u32 s2, 184"); A("s_cbranch_scc1 K1_done")
A("s_load_dwordx2 s[4:5], s[0:1], 0")
A("s_load_dwordx2 s[6:7], s[0:1], 24")
A("s_load_dwordx2 s[10:11], s[0:1], 48")
A("s_load_dwordx2 s[8:9], s[0:1], 96")
A("v_lshrrev_b32 v1, 6, v0"); A("v_and_b32 v2, 63, v0")
nop(0)
A("v_readfirstlane_b32 s3, v1")
A("s_waitcnt lgkmcnt(0)")
srd(12, 4, 5, 8192)
srd(20, 8, 9, WS_BYTES)
A("s_lshl_b32 s24, s3, 11")
A("v_lshlrev_b32 v3, 4, v2")
A("buffer_load_dwordx4 v[8:11], v3, s[12:15], s24 offen")
A("buffer_load_dwordx4 v[12:15], v3, s[12:15], s24 offen offset:1024")
A("s_cmp_ge_u32 s2, 128"); A("s_cbranch_scc1 K1_hsel")
srd(16, 6, 7, 4096 * 512 * 2)
A("s_mov_b32 s25, s2"); A("s_mov_b32 s26, 8192")
A("s_branch K1_sel_done")
lab("K1_hsel")
srd(16, 10, 11, 1792 * 512 * 2)
A("s_sub_u32 s25, s2, 128"); A("s_mov_b32 s26, 3584")
lab("K1_sel_done")
A("s_lshr_b32 s27, s25, 2"); A("s_and_b32 s28, s25, 3")
A("s_lshl_b32 s29, s28, 7"); A("s_lshl_b32 s30, s3, 5"); A("s_add_u32 s29, s29, s30")
A("s_mul_i32 s30, s29, s26"); A("s_lshl_b32 s31, s27, 8"); A("s_add_u32 s30, s30, s31")
A("v_lshrrev_b32 v4, 4, v2"); A("v_lshlrev_b32 v4, 3, v4"); A("v_mul_lo_u32 v4, v4, s26")
A("v_and_b32 v5, 15, v2"); A("v_lshlrev_b32 v5, 4, v5"); A("v_add_u32 v4, v4, v5")
for e in range(8):
    A("buffer_load_dwordx4 v[%d:%d], v4, s[16:19], s30 offen" % (32 + 4 * e, 35 + 4 * e))
    if e < 7: A("s_add_u32 s30, s30, s26")
A("s_cmp_ge_u32 s2, 8"); A("s_cbranch_scc1 K1_nozero")
A("v_mov_b32 v64, 0"); A("v_mov_b32 v65, 0"); A("v_mov_b32 v66, 0"); A("v_mov_b32 v67, 0")
A("s_lshl_b32 s31, s2, 12"); A("s_add_u32 s31, s31, 0x%x" % SACC)
A("v_lshlrev_b32 v5, 4, v0")
A("buffer_store_dwordx4 v[64:67], v5, s[20:23], s31 offen")
lab("K1_nozero")
A("s_waitcnt vmcnt(8)")
A("s_waitcnt vmcnt(0)") if False else None
L.pop() if False else None
def ln_row(src, f, out_lds_off):
    for i in range(4):
        A("v_lshlrev_b32 v%d, 16, v%d" % (f + 2 * i, src + i))
        A("v_and_b32 v%d, 0xffff0000, v%d" % (f + 2 * i + 1, src + i))
    A("v_add_f32 v90, v%d, v%d" % (f, f + 1))
    for i in range(2, 8): A("v_add_f32 v90, v90, v%d" % (f + i))
    nop(1)
    wave_sum_all(90, 40)
    A("v_mul_f32 v90, 0x3b000000, v90")
    A("v_mov_b32 v91, 0")
    for i in range(8):
        A("v_sub_f32 v92, v%d, v90" % (f + i)); A("v_fmac_f32 v91, v92, v92")
    nop(1)
    wave_sum_all(91, 40)
    A("v_mul_f32 v91, 0x3b000000, v91")
    bf16r(90, 90); bf16r(91, 91)
    A("v_add_f32 v91, 0x3727c5ac, v91")
    bf16r(91, 91)
    A("v_sqrt_f32 v91, v91"); nop(0)
    bf16r(91, 91)
    A("v_rcp_f32 v93, v91"); nop(0)
    A("v_fma_f32 v94, -v91, v93, 1.0"); A("v_fma_f32 v93, v94, v93, v93")
    for i in range(8):
        A("v_sub_f32 v92, v%d, v90" % (f + i)); bf16r(92, 92)
        A("v_mul_f32 v95, v92, v93")
        A("v_fma_f32 v96, -v95, v91, v92"); A("v_fma_f32 v%d, v96, v93, v95" % (f + i))
    for i in range(4):
        A("v_cvt_pk_bf16_f32 v%d, v%d, v%d" % (src + i, f + 2 * i, f + 2 * i + 1))
    nop(0)
    A("ds_write_b128 v97, v[%d:%d] offset:%d" % (src, src + 3, out_lds_off))
A("v_lshlrev_b32 v97, 4, v2"); A("v_mov_b32 v98, s24"); A("v_add_u32 v97, v97, v98")
A("s_waitcnt vmcnt(8)")
A("s_cmp_ge_u32 s2, 8"); A("s_cbranch_scc1 K1_w_ok"); A("s_waitcnt vmcnt(9)"); lab("K1_w_ok")
ln_row(8, 72, 0)
ln_row(12, 80, 1024)
A("s_waitcnt lgkmcnt(0)"); A("s_barrier")
A("v_and_b32 v5, 7, v2"); A("v_lshlrev_b32 v5, 10, v5")
A("v_lshrrev_b32 v6, 4, v2"); A("v_lshlrev_b32 v6, 4, v6"); A("v_add_u32 v5, v5, v6")
A("s_lshl_b32 s31, s29, 1"); A("v_add_u32 v5, s31, v5")
A("ds_read_b128 v[8:11], v5")
A("s_mov_b32 s32, 0x05040100"); A("s_mov_b32 s33, 0x07060302")
A("s_waitcnt vmcnt(0) lgkmcnt(0)")
matmul_wave(32, 64, 96, 8, 32, 33)
A("v_lshrrev_b32 v5, 4, v2"); A("v_lshlrev_b32 v5, 11, v5")
A("v_and_b32 v6, 15, v2"); A("v_lshlrev_b32 v6, 5, v6"); A("v_add_u32 v5, v5, v6")
A("s_lshl_b32 s31, s3, 12"); A("s_add_u32 s31, s31, 8192"); A("v_add_u32 v5, s31, v5")
A("v_cmp_gt_u32 vcc, 32, v2"); A("s_and_saveexec_b64 s[34:35], vcc")
for c in range(8):
    for r in range(4):
        A("ds_write_b32 v5, v%d offset:%d" % (96 + 4 * c + r, r * 512 + c * 4))
A("s_mov_b64 exec, s[34:35]")
A("s_waitcnt lgkmcnt(0)"); A("s_barrier")
A("v_lshlrev_b32 v5, 4, v0")
for w in range(4): A("ds_read_b128 v[%d:%d], v5 offset:%d" % (8 + 4 * w, 11 + 4 * w, 8192 + 4096 * w))
A("s_waitcnt lgkmcnt(0)")
for i in range(4):
    A("v_add_f32 v%d, v%d, v%d" % (8 + i, 8 + i, 12 + i)); A("v_add_f32 v%d, v%d, v%d" % (16 + i, 16 + i, 20 + i)); A("v_add_f32 v%d, v%d, v%d" % (8 + i, 8 + i, 16 + i))
A("s_cmp_ge_u32 s2, 128"); A("s_cbranch_scc1 K1_hst")
A("s_mov_b32 s36, 16384"); A("s_mov_b32 s37, 0x%x" % QP); A("s_branch K1_st")
lab("K1_hst")
A("s_mov_b32 s36, 7168"); A("s_mov_b32 s37, 0x%x" % HP)
lab("K1_st")
A("s_lshl_b32 s38, s36, 3"); A("s_mul_i32 s38, s38, s28"); A("s_add_u32 s37, s37, s38")
A("s_lshl_b32 s38, s27, 9"); A("s_add_u32 s37, s37, s38")
A("v_lshrrev_b32 v5, 5, v0"); A("v_mul_lo_u32 v5, v5, s36")
A("v_and_b32 v6, 31, v0"); A("v_lshlrev_b32 v6, 4, v6"); A("v_add_u32 v5, v5, v6")
A("buffer_store_dwordx4 v[8:11], v5, s[20:23], s37 offen")
lab("K1_done")
A("s_endpgm")
kernel_desc(K1, 128)

K2 = NAME + "_k2_kernel"
W = 24
VW = 100
VS = 32
VQ = 16
VP = 64
VACC = 200
VPK = 232
kernel_begin(K2)
A("s_cmp_ge_u32 s2, 512"); A("s_cbranch_scc1 K2_done")
A("s_load_dwordx2 s[4:5], s[0:1], 8")
A("s_load_dwordx2 s[6:7], s[0:1], 16")
A("s_load_dwordx2 s[8:9], s[0:1], 96")
A("v_lshrrev_b32 v1, 6, v0"); A("v_and_b32 v2, 63, v0"); nop(0)
A("v_readfirstlane_b32 s3, v1")
A("s_waitcnt lgkmcnt(0)")
srd(12, 4, 5, 0x4000000); srd(16, 6, 7, 0x4000000); srd(20, 8, 9, WS_BYTES)
A("s_lshr_b32 s24, s2, 3"); A("s_and_b32 s25, s2, 7")
A("s_lshl_b32 s26, s24, 20"); A("s_lshl_b32 s27, s25, 17"); A("s_add_u32 s26, s26, s27")
A("s_lshl_b32 s27, s3, 15"); A("s_add_u32 s26, s26, s27")
A("s_lshr_b32 s28, s24, 3"); A("s_and_b32 s29, s24, 7")
A("s_lshl_b32 s30, s28, 14"); A("s_lshl_b32 s31, s29, 11"); A("s_add_u32 s30, s30, s31")
A("v_lshlrev_b32 v3, 3, v0")
for ks in range(4):
    A("buffer_load_dwordx2 v[%d:%d], v3, s[20:23], s30 offen" % (4 + 2 * ks, 5 + 2 * ks))
    if ks < 3: A("s_add_u32 s30, s30, 131072")
A("v_and_b32 v12, 15, v2"); A("v_lshrrev_b32 v13, 4, v2")
A("v_lshlrev_b32 v14, 8, v13"); A("v_lshl_add_u32 v14, v12, 4, v14")
A("s_mul_i32 s45, s3, 4352"); A("s_add_u32 s45, s45, 10240")
A("v_mul_u32_u24 v96, 272, v13"); A("v_lshl_add_u32 v96, v12, 4, v96"); A("v_add_u32 v96, s45, v96")
A("v_mul_u32_u24 v97, 272, v12"); A("v_lshl_add_u32 v97, v13, 4, v97"); A("v_add_u32 v97, s45, v97")
A("v_lshlrev_b32 v15, 10, v13"); A("v_lshl_add_u32 v15, v12, 4, v15")
A("s_mov_b32 s32, s26")
A("s_mov_b32 s33, s26"); A("s_add_u32 s34, s26, 4096")
loads = [("K", t, i) for t in range(8) for i in range(4)] + [("V", g, e) for g in range(4) for e in range(8)]
def issue(j):
    kind, a, b = loads[j]
    r = VW + 4 * (j % W)
    if kind == "K":
        A("buffer_load_dwordx4 v[%d:%d], v14, s[12:15], s32 offen offset:%d" % (r, r + 3, 1024 * b))
        if b == 3: A("s_add_u32 s32, s32, 4096")
    else:
        A("buffer_load_dwordx4 v[%d:%d], v15, s[16:19], s%d offen offset:%d" % (r, r + 3, 33 if b < 4 else 34, 256 * (b & 3)))
        if b == 7: A("s_add_u32 s33, s33, 8192"); A("s_add_u32 s34, s34, 8192")
for j in range(W): issue(j)
nissued = W
A("s_waitcnt vmcnt(%d)" % W)
A("v_add_f32 v4, v4, v6"); A("v_add_f32 v5, v5, v7"); A("v_add_f32 v8, v8, v10"); A("v_add_f32 v9, v9, v11")
A("v_add_f32 v4, v4, v8"); A("v_add_f32 v5, v5, v9")
A("v_cvt_pk_bf16_f32 v4, v4, v5"); A("v_lshlrev_b32 v5, 2, v0")
A("ds_write_b32 v5, v4")
for i in range(16): A("v_mov_b32 v%d, 0" % (VQ + i))
A("v_lshlrev_b32 v5, 8, v12"); A("v_lshl_add_u32 v5, v13, 4, v5")
A("s_waitcnt lgkmcnt(0)"); A("s_barrier")
A("v_cmp_gt_u32 vcc, 4, v12"); A("s_and_saveexec_b64 s[36:37], vcc")
for i in range(4): A("ds_read_b128 v[%d:%d], v5 offset:%d" % (VQ + 4 * i, VQ + 4 * i + 3, 64 * i))
A("s_mov_b64 exec, s[36:37]")
A("s_waitcnt lgkmcnt(0)")
consumed = 0
for t in range(8):
    consumed += 4
    A("s_waitcnt vmcnt(%d)" % (nissued - consumed))
    for i in range(4):
        r = VW + 4 * ((4 * t + i) % W)
        A("ds_write_b128 v96, v[%d:%d] offset:%d" % (r, r + 3, 1088 * i))
    A("s_waitcnt lgkmcnt(0)")
    for _ in range(4):
        if nissued < len(loads): issue(nissued); nissued += 1
    for i in range(4): A("ds_read_b128 v[%d:%d], v97 offset:%d" % (VP + 4 * i, VP + 4 * i + 3, 64 * i))
    A("s_waitcnt lgkmcnt(0)")
    for i in range(4):
        A("v_mfma_f32_16x16x32_bf16 v[%d:%d], v[%d:%d], v[%d:%d], %s" % (VS + 4 * t, VS + 4 * t + 3, VP + 4 * i, VP + 4 * i + 3, VQ + 4 * i, VQ + 4 * i + 3, "0" if i == 0 else "v[%d:%d]" % (VS + 4 * t, VS + 4 * t + 3)))
nop(7); nop(1)
A("s_mov_b32 s38, 0x3db504f3")
for i in range(0, 32, 2):
    a, b = VS + i, VS + i + 1
    A("v_cvt_pk_bf16_f32 v4, v%d, v%d" % (a, b))
    A("v_lshlrev_b32 v%d, 16, v4" % a); A("v_and_b32 v%d, 0xffff0000, v4" % b)
    A("v_mul_f32 v%d, s38, v%d" % (a, a)); A("v_mul_f32 v%d, s38, v%d" % (b, b))
    A("v_cvt_pk_bf16_f32 v4, v%d, v%d" % (a, b))
    A("v_lshlrev_b32 v%d, 16, v4" % a); A("v_and_b32 v%d, 0xffff0000, v4" % b)
A("v_max_f32 v4, v%d, v%d" % (VS, VS + 1))
for i in range(2, 32, 2): A("v_max3_f32 v4, v4, v%d, v%d" % (VS + i, VS + i + 1))
A("v_xor_b32 v5, 16, v2"); A("v_lshlrev_b32 v5, 2, v5"); A("v_xor_b32 v6, 32, v2"); A("v_lshlrev_b32 v6, 2, v6")
A("ds_bpermute_b32 v7, v5, v4"); A("s_waitcnt lgkmcnt(0)"); A("v_max_f32 v4, v4, v7")
A("ds_bpermute_b32 v7, v6, v4"); A("s_waitcnt lgkmcnt(0)"); A("v_max_f32 v4, v4, v7")
A("v_mov_b32 v8, 0")
for i in range(32):
    A("v_sub_f32 v%d, v%d, v4" % (VS + i, VS + i)); A("v_mul_f32 v%d, 0x%x, v%d" % (VS + i, LOG2E, VS + i))
    A("v_exp_f32 v%d, v%d" % (VS + i, VS + i)); nop(0)
    A("v_add_f32 v8, v8, v%d" % (VS + i))
for i in range(16): A("v_cvt_pk_bf16_f32 v%d, v%d, v%d" % (VPK + i, VS + 2 * i, VS + 2 * i + 1))
A("ds_bpermute_b32 v7, v5, v8"); A("s_waitcnt lgkmcnt(0)"); A("v_add_f32 v8, v8, v7")
A("ds_bpermute_b32 v7, v6, v8"); A("s_waitcnt lgkmcnt(0)"); A("v_add_f32 v8, v8, v7")
A("s_mov_b32 s40, 0x05040100"); A("s_mov_b32 s41, 0x07060302")
for g in range(4):
    consumed += 8
    A("s_waitcnt vmcnt(%d)" % (nissued - consumed))
    base = 32 + 8 * g
    for c in range(8):
        for m in range(4):
            r0 = VW + 4 * ((base + 2 * m) % W) + c // 2; r1 = VW + 4 * ((base + 2 * m + 1) % W) + c // 2
            A("v_perm_b32 v%d, v%d, v%d, s%d" % (VP + 4 * c + m, r1, r0, 40 if c % 2 == 0 else 41))
    for _ in range(8):
        if nissued < len(loads): issue(nissued); nissued += 1
    nop(1)
    for c in range(8):
        A("v_mfma_f32_16x16x32_bf16 v[%d:%d], v[%d:%d], v[%d:%d], %s" % (VACC + 4 * c, VACC + 4 * c + 3, VPK + 4 * g, VPK + 4 * g + 3, VP + 4 * c, VP + 4 * c + 3, "0" if g == 0 else "v[%d:%d]" % (VACC + 4 * c, VACC + 4 * c + 3)))
    nop(3)
nop(7); nop(1)
A("s_lshl_b32 s42, s3, 11"); A("s_add_u32 s42, s42, 1024")
A("v_lshlrev_b32 v9, 5, v2"); A("v_add_u32 v9, s42, v9")
A("v_cmp_gt_u32 vcc, 16, v2"); A("s_and_saveexec_b64 s[36:37], vcc")
for c in range(8):
    for r in range(4):
        A("ds_write_b32 v9, v%d offset:%d" % (VACC + 4 * c + r, r * 512 + c * 4))
A("s_mov_b64 exec, s[36:37]")
A("s_lshl_b32 s42, s3, 4"); A("s_add_u32 s42, s42, 9216")
A("v_lshlrev_b32 v9, 2, v2"); A("v_add_u32 v9, s42, v9")
A("v_cmp_gt_u32 vcc, 4, v2"); A("s_and_saveexec_b64 s[36:37], vcc")
A("ds_write_b32 v9, v4"); A("ds_write_b32 v9, v8 offset:64")
A("s_mov_b64 exec, s[36:37]")
A("s_waitcnt lgkmcnt(0)"); A("s_barrier")
A("v_lshlrev_b32 v9, 2, v1")
for w in range(4):
    A("ds_read_b32 v%d, v9 offset:%d" % (20 + w, 9216 + 16 * w)); A("ds_read_b32 v%d, v9 offset:%d" % (24 + w, 9280 + 16 * w))
A("v_lshlrev_b32 v10, 9, v1"); A("v_lshl_add_u32 v10, v2, 3, v10")
for w in range(4): A("ds_read_b64 v[%d:%d], v10 offset:%d" % (28 + 2 * w, 29 + 2 * w, 1024 + 2048 * w))
A("s_waitcnt lgkmcnt(0)")
A("v_max_f32 v4, v20, v21"); A("v_max3_f32 v4, v4, v22, v23")
A("v_mov_b32 v8, 0"); A("v_mov_b32 v16, 0"); A("v_mov_b32 v17, 0")
for w in range(4):
    A("v_sub_f32 v11, v%d, v4" % (20 + w)); A("v_mul_f32 v11, 0x%x, v11" % LOG2E); A("v_exp_f32 v11, v11"); nop(0)
    A("v_fmac_f32 v8, v11, v%d" % (24 + w)); A("v_fmac_f32 v16, v11, v%d" % (28 + 2 * w)); A("v_fmac_f32 v17, v11, v%d" % (29 + 2 * w))
A("s_lshl_b32 s42, s2, 11"); A("s_add_u32 s42, s42, 0x%x" % OP)
A("buffer_store_dwordx2 v[16:17], v3, s[20:23], s42 offen")
A("v_mov_b32 v5, v8")
A("s_lshl_b32 s42, s2, 5"); A("s_add_u32 s42, s42, 0x%x" % ML)
A("v_lshlrev_b32 v9, 3, v1")
A("v_cmp_eq_u32 vcc, 0, v2"); A("s_and_saveexec_b64 s[36:37], vcc")
A("buffer_store_dwordx2 v[4:5], v9, s[20:23], s42 offen")
A("s_mov_b64 exec, s[36:37]")
lab("K2_done")
A("s_endpgm")
kernel_desc(K2, 248)

K3 = NAME + "_k3_kernel"
kernel_begin(K3)
A("s_cmp_ge_u32 s2, 184"); A("s_cbranch_scc1 K3_done")
A("s_load_dwordx2 s[4:5], s[0:1], 32")
A("s_load_dwordx2 s[6:7], s[0:1], 64")
A("s_load_dwordx2 s[10:11], s[0:1], 56")
A("s_load_dwordx2 s[8:9], s[0:1], 96")
A("v_lshrrev_b32 v1, 6, v0"); A("v_and_b32 v2, 63, v0"); nop(0)
A("v_readfirstlane_b32 s3, v1")
A("s_waitcnt lgkmcnt(0)")
srd(20, 8, 9, WS_BYTES)
A("s_cmp_ge_u32 s2, 128"); A("s_cbranch_scc1 K3_fsel")
srd(16, 4, 5, 4096 * 512 * 2); A("s_mov_b32 s25, s2"); A("s_mov_b32 s44, 0x%x" % SACC)
A("s_branch K3_sel_done")
lab("K3_fsel")
srd(16, 6, 7, 1792 * 512 * 2); A("s_sub_u32 s25, s2, 128"); A("s_mov_b32 s44, 0x%x" % GACC)
lab("K3_sel_done")
A("s_lshr_b32 s27, s25, 2"); A("s_and_b32 s28, s25, 3")
A("s_lshl_b32 s29, s27, 7"); A("s_lshl_b32 s30, s3, 5"); A("s_add_u32 s29, s29, s30")
A("s_lshl_b32 s30, s29, 10"); A("s_lshl_b32 s31, s28, 8"); A("s_add_u32 s30, s30, s31")
A("v_lshrrev_b32 v4, 4, v2"); A("v_lshlrev_b32 v4, 13, v4")
A("v_and_b32 v5, 15, v2"); A("v_lshlrev_b32 v5, 4, v5"); A("v_add_u32 v4, v4, v5")
for e in range(8):
    A("buffer_load_dwordx4 v[%d:%d], v4, s[16:19], s30 offen" % (32 + 4 * e, 35 + 4 * e))
    if e < 7: A("s_add_u32 s30, s30, 1024")
A("v_lshrrev_b32 v6, 5, v0"); A("v_and_b32 v7, 31, v0")
A("s_cmp_ge_u32 s2, 128"); A("s_cbranch_scc1 K3_fpre")
A("s_lshr_b32 s31, s27, 2"); A("s_and_b32 s32, s27, 3")
A("s_lshl_b32 s33, s31, 14"); A("s_lshl_b32 s34, s32, 9"); A("s_add_u32 s33, s33, s34"); A("s_add_u32 s33, s33, 0x%x" % OP)
A("v_lshlrev_b32 v8, 17, v6"); A("v_lshl_add_u32 v8, v7, 4, v8")
for s in range(8): A("buffer_load_dwordx4 v[%d:%d], v8, s[20:23], s33 offen offset:%d" % (96 + 4 * s, 99 + 4 * s, 2048 * s) if s < 2 else "s_nop 0")
L[:] = [x for x in L]
for s in range(2, 8):
    pass
A("s_add_u32 s34, s33, 4096")
for s in range(2, 8):
    if s % 2 == 0 and s > 2: A("s_add_u32 s34, s34, 4096")
    A("buffer_load_dwordx4 v[%d:%d], v8, s[20:23], s34 offen offset:%d" % (96 + 4 * s, 99 + 4 * s, 2048 * (s % 2)))
A("s_lshl_b32 s33, s31, 8"); A("s_lshl_b32 s34, s32, 3"); A("s_add_u32 s33, s33, s34"); A("s_add_u32 s33, s33, 0x%x" % ML)
A("v_lshlrev_b32 v9, 11, v6")
for s in range(8): A("buffer_load_dwordx2 v[%d:%d], v9, s[20:23], s33 offen offset:%d" % (128 + 2 * s, 129 + 2 * s, 32 * s))
A("s_waitcnt vmcnt(0)")
A("v_max_f32 v10, v128, v130")
for s in range(2, 8, 2): A("v_max3_f32 v10, v10, v%d, v%d" % (128 + 2 * s, 130 + 2 * s))
A("v_mov_b32 v11, 0")
for i in range(4): A("v_mov_b32 v%d, 0" % (12 + i))
for s in range(8):
    A("v_sub_f32 v16, v%d, v10" % (128 + 2 * s)); A("v_mul_f32 v16, 0x%x, v16" % LOG2E); A("v_exp_f32 v16, v16"); nop(0)
    A("v_fmac_f32 v11, v16, v%d" % (129 + 2 * s))
    for i in range(4): A("v_fmac_f32 v%d, v16, v%d" % (12 + i, 96 + 4 * s + i))
A("v_rcp_f32 v16, v11"); nop(0)
A("v_fma_f32 v17, -v11, v16, 1.0"); A("v_fma_f32 v16, v17, v16, v16")
for i in range(4): A("v_mul_f32 v%d, v%d, v16" % (12 + i, 12 + i))
A("s_branch K3_pre_done")
lab("K3_fpre")
srd(12, 10, 11, 3584)
A("s_mov_b32 s36, 7168"); A("v_mul_lo_u32 v8, v6, s36"); A("v_lshl_add_u32 v8, v7, 4, v8")
A("s_lshl_b32 s33, s27, 9"); A("s_add_u32 s33, s33, 0x%x" % HP)
for ks in range(4):
    A("buffer_load_dwordx4 v[%d:%d], v8, s[20:23], s33 offen" % (96 + 4 * ks, 99 + 4 * ks))
    if ks < 3: A("s_add_u32 s33, s33, 57344")
A("v_lshlrev_b32 v9, 3, v7"); A("s_lshl_b32 s33, s27, 8")
A("buffer_load_dwordx2 v[112:113], v9, s[12:15], s33 offen")
A("s_waitcnt vmcnt(0)")
A("v_lshlrev_b32 v114, 16, v112"); A("v_and_b32 v115, 0xffff0000, v112"); A("v_lshlrev_b32 v116, 16, v113"); A("v_and_b32 v117, 0xffff0000, v113")
for i in range(4):
    A("v_add_f32 v%d, v%d, v%d" % (96 + i, 96 + i, 100 + i)); A("v_add_f32 v%d, v%d, v%d" % (104 + i, 104 + i, 108 + i)); A("v_add_f32 v%d, v%d, v%d" % (12 + i, 96 + i, 104 + i))
    bf16r(12 + i, 12 + i)
    A("v_add_f32 v%d, v%d, v%d" % (12 + i, 12 + i, 114 + i)); bf16r(12 + i, 12 + i)
    x = 12 + i
    A("v_mul_f32 v16, v%d, v%d" % (x, x)); A("v_mul_f32 v16, v16, v%d" % x)
    A("v_mov_b32 v17, 0x3d372713"); A("v_fma_f32 v16, v16, v17, v%d" % x)
    A("v_mul_f32 v16, 0x3f4c422a, v16")
    A("v_mul_f32 v16, 0x4038aa3b, v16")
    A("v_exp_f32 v16, v16"); nop(0)
    A("v_add_f32 v16, 1.0, v16"); A("v_rcp_f32 v16, v16"); nop(0)
    A("v_fma_f32 v16, v16, -2.0, 1.0")
    A("v_add_f32 v16, 1.0, v16"); A("v_mul_f32 v16, 0.5, v16"); A("v_mul_f32 v%d, v%d, v16" % (x, x))
lab("K3_pre_done")
A("v_cvt_pk_bf16_f32 v12, v12, v13"); A("v_cvt_pk_bf16_f32 v13, v14, v15")
A("v_lshlrev_b32 v8, 8, v6"); A("v_lshl_add_u32 v8, v7, 3, v8")
A("ds_write_b64 v8, v[12:13]")
A("s_waitcnt lgkmcnt(0)"); A("s_barrier")
A("v_and_b32 v5, 7, v2"); A("v_lshlrev_b32 v5, 8, v5")
A("v_lshrrev_b32 v8, 4, v2"); A("v_lshlrev_b32 v8, 4, v8"); A("v_add_u32 v5, v5, v8")
A("s_lshl_b32 s31, s3, 6"); A("v_add_u32 v5, s31, v5")
A("ds_read_b128 v[8:11], v5")
A("s_mov_b32 s32, 0x05040100"); A("s_mov_b32 s33, 0x07060302")
A("s_waitcnt vmcnt(0) lgkmcnt(0)")
matmul_wave(32, 64, 96, 8, 32, 33)
A("v_lshrrev_b32 v5, 4, v2"); A("v_lshlrev_b32 v5, 11, v5")
A("v_and_b32 v8, 15, v2"); A("v_lshlrev_b32 v8, 5, v8"); A("v_add_u32 v5, v5, v8")
A("s_lshl_b32 s31, s3, 12"); A("s_add_u32 s31, s31, 8192"); A("v_add_u32 v5, s31, v5")
A("v_cmp_gt_u32 vcc, 32, v2"); A("s_and_saveexec_b64 s[34:35], vcc")
for c in range(8):
    for r in range(4):
        A("ds_write_b32 v5, v%d offset:%d" % (96 + 4 * c + r, r * 512 + c * 4))
A("s_mov_b64 exec, s[34:35]")
A("s_waitcnt lgkmcnt(0)"); A("s_barrier")
A("v_lshlrev_b32 v5, 2, v0")
for q in range(4):
    for w in range(4): A("ds_read_b32 v%d, v5 offset:%d" % (16 + 4 * q + w, 8192 + 4096 * w + 1024 * q))
A("s_waitcnt lgkmcnt(0)")
A("v_lshrrev_b32 v8, 7, v0"); A("v_lshlrev_b32 v8, 11, v8"); A("v_and_b32 v9, 127, v0"); A("v_lshl_add_u32 v8, v9, 2, v8")
A("s_lshl_b32 s31, s28, 9"); A("s_add_u32 s31, s31, s44")
for q in range(4):
    b = 16 + 4 * q
    A("v_add_f32 v%d, v%d, v%d" % (b, b, b + 1)); A("v_add_f32 v%d, v%d, v%d" % (b + 2, b + 2, b + 3)); A("v_add_f32 v%d, v%d, v%d" % (b, b, b + 2))
    A("buffer_atomic_add_f32 v%d, v8, s[20:23], s31 offen offset:%d" % (b, 0))
    if q < 3: A("s_add_u32 s31, s31, 4096")
lab("K3_done")
A("s_endpgm")
kernel_desc(K3, 144)

K4 = NAME + "_k4_kernel"
kernel_begin(K4)
A("s_cmp_ge_u32 s2, 16"); A("s_cbranch_scc1 K4_done")
A("s_load_dwordx2 s[4:5], s[0:1], 0")
A("s_load_dwordx2 s[6:7], s[0:1], 72")
A("s_load_dwordx2 s[10:11], s[0:1], 80")
A("s_load_dwordx2 s[8:9], s[0:1], 96")
A("s_waitcnt lgkmcnt(0)")
srd(12, 4, 5, 8192); srd(16, 6, 7, 1024); srd(20, 8, 9, WS_BYTES); srd(24, 10, 11, 8192)
A("s_lshl_b32 s3, s2, 8"); A("v_add_u32 v1, s3, v0")
A("v_lshlrev_b32 v2, 1, v1"); A("v_lshlrev_b32 v3, 2, v1"); A("v_and_b32 v4, 511, v1"); A("v_lshlrev_b32 v4, 1, v4")
A("buffer_load_ushort v5, v2, s[12:15], 0 offen")
A("buffer_load_ushort v6, v4, s[16:19], 0 offen")
A("s_mov_b32 s28, 0x%x" % SACC); A("s_mov_b32 s29, 0x%x" % GACC)
A("buffer_load_dword v7, v3, s[20:23], s28 offen")
A("buffer_load_dword v8, v3, s[20:23], s29 offen")
A("s_waitcnt vmcnt(0)")
A("v_lshlrev_b32 v5, 16, v5"); A("v_lshlrev_b32 v6, 16, v6")
bf16r(7, 7); bf16r(8, 8)
A("v_add_f32 v8, v8, v6"); bf16r(8, 8)
A("v_mul_f32 v9, 0xbfb8aa3b, v8"); A("v_exp_f32 v9, v9"); nop(0)
A("v_add_f32 v9, 1.0, v9"); A("v_rcp_f32 v10, v9"); nop(0)
A("v_fma_f32 v11, -v9, v10, 1.0"); A("v_fma_f32 v10, v11, v10, v10")
A("v_mul_f32 v8, v8, v10"); bf16r(8, 8)
A("v_mul_f32 v7, v7, v8"); bf16r(7, 7)
A("v_add_f32 v5, v5, v7")
A("v_cvt_pk_bf16_f32 v5, v5, v5")
A("buffer_store_short v5, v2, s[24:27], 0 offen")
lab("K4_done")
A("s_endpgm")
kernel_desc(K4, 32)

L = [x for x in L if x is not None]
launch = """; @launch kernel=%s grid=(184,1,1) block=(256,1,1) lds=24576
; @launch kernel=%s grid=(512,1,1) block=(256,1,1) lds=27648
; @launch kernel=%s grid=(184,1,1) block=(256,1,1) lds=24576
; @launch kernel=%s grid=(16,1,1) block=(256,1,1) lds=0
""" % (K1, K2, K3, K4)
txt = HEADER + launch + '.amdgcn_target "amdgcn-amd-amdhsa--gfx950"\n.text\n' + "\n".join(L) + '\n.section .rodata,"a"\n.p2align 6\n' + "\n.p2align 6\n".join(KD) + "\n"
open(OUT, "w").write(txt)
print("wrote", OUT, len(txt))
```

```python
import sys
NAME = "recurrent_scan__gqa_block_cached__dense_activation_gelu__decode"
OUT = sys.argv[1] if len(sys.argv) > 1 else "cdna_kernels/%s.s" % NAME

QP = 0x0
HP = 0x80000
SACC = 0xC0000
GACC = 0xC4000
OP = 0x100000
ML = 0x200000
WS_BYTES = 0x210000

L = []
def A(s): L.append("    " + s)
def lab(s): L.append(s + ":")
def nop(n): A("s_nop %d" % n)

HEADER = open("cdna_kernels/%s.s.ref" % NAME).read().split("; Override launch")[0]

def srd(d, lo, hi, nbytes):
    A("s_mov_b32 s%d, s%d" % (d, lo)); A("s_mov_b32 s%d, s%d" % (d+1, hi))
    A("s_mov_b32 s%d, 0x%x" % (d+2, nbytes)); A("s_mov_b32 s%d, 0x00020000" % (d+3))

def bf16r(vd, vs):
    A("v_cvt_pk_bf16_f32 v%d, v%d, v%d" % (vd, vs, vs))
    A("v_lshlrev_b32 v%d, 16, v%d" % (vd, vd))

def kernel_begin(name):
    L.append(".globl %s" % name); L.append(".p2align 8"); L.append(".type %s,@function" % name); lab(name)

KD = []
def kernel_desc(name, vgpr, sgpr=102):
    KD.append(""".amdhsa_kernel %s
  .amdhsa_next_free_vgpr %d
  .amdhsa_next_free_sgpr %d
  .amdhsa_accum_offset %d
  .amdhsa_group_segment_fixed_size 0
  .amdhsa_kernarg_size 104
  .amdhsa_user_sgpr_count 2
  .amdhsa_user_sgpr_kernarg_segment_ptr 1
  .amdhsa_system_sgpr_workgroup_id_x 1
.end_amdhsa_kernel""" % (name, vgpr, sgpr, (vgpr + 3) // 4 * 4))

def wave_sum_all(v, tmp_s):
    A("v_add_f32_dpp v%d, v%d, v%d quad_perm:[1,0,3,2] row_mask:0xf bank_mask:0xf" % (v, v, v)); nop(1)
    A("v_add_f32_dpp v%d, v%d, v%d quad_perm:[2,3,0,1] row_mask:0xf bank_mask:0xf" % (v, v, v)); nop(1)
    A("v_add_f32_dpp v%d, v%d, v%d row_half_mirror row_mask:0xf bank_mask:0xf" % (v, v, v)); nop(1)
    A("v_add_f32_dpp v%d, v%d, v%d row_mirror row_mask:0xf bank_mask:0xf" % (v, v, v)); nop(1)
    for i in range(4): A("v_readlane_b32 s%d, v%d, %d" % (tmp_s + i, v, 16 * i))
    nop(1)
    A("v_mov_b32 v%d, s%d" % (v, tmp_s))
    for i in range(1, 4): A("v_add_f32 v%d, s%d, v%d" % (v, tmp_s + i, v))

def matmul_wave(vld, vperm, vacc, vA, s_sel_lo, s_sel_hi):
    for c in range(8):
        for m in range(4):
            sel = s_sel_lo if c % 2 == 0 else s_sel_hi
            A("v_perm_b32 v%d, v%d, v%d, s%d" % (vperm + 4 * c + m, vld + 4 * (2 * m + 1) + c // 2, vld + 4 * (2 * m) + c // 2, sel))
    nop(1)
    for c in range(8):
        A("v_mfma_f32_16x16x32_bf16 v[%d:%d], v[%d:%d], v[%d:%d], 0" % (vacc + 4 * c, vacc + 4 * c + 3, vA, vA + 3, vperm + 4 * c, vperm + 4 * c + 3))
    nop(7); nop(1)

LOG2E = 0x3fb8aa3b

K1 = NAME + "_k1_kernel"
kernel_begin(K1)
A("s_cmp_ge_u32 s2, 184"); A("s_cbranch_scc1 K1_done")
A("s_load_dwordx2 s[4:5], s[0:1], 0")
A("s_load_dwordx2 s[6:7], s[0:1], 24")
A("s_load_dwordx2 s[10:11], s[0:1], 48")
A("s_load_dwordx2 s[8:9], s[0:1], 96")
A("v_lshrrev_b32 v1, 6, v0"); A("v_and_b32 v2, 63, v0")
nop(0)
A("v_readfirstlane_b32 s3, v1")
A("s_waitcnt lgkmcnt(0)")
srd(12, 4, 5, 8192)
srd(20, 8, 9, WS_BYTES)
A("s_lshl_b32 s24, s3, 11")
A("v_lshlrev_b32 v3, 4, v2")
A("buffer_load_dwordx4 v[8:11], v3, s[12:15], s24 offen")
A("buffer_load_dwordx4 v[12:15], v3, s[12:15], s24 offen offset:1024")
A("s_cmp_ge_u32 s2, 128"); A("s_cbranch_scc1 K1_hsel")
srd(16, 6, 7, 4096 * 512 * 2)
A("s_mov_b32 s25, s2"); A("s_mov_b32 s26, 8192")
A("s_branch K1_sel_done")
lab("K1_hsel")
srd(16, 10, 11, 1792 * 512 * 2)
A("s_sub_u32 s25, s2, 128"); A("s_mov_b32 s26, 3584")
lab("K1_sel_done")
A("s_lshr_b32 s27, s25, 2"); A("s_and_b32 s28, s25, 3")
A("s_lshl_b32 s29, s28, 7"); A("s_lshl_b32 s30, s3, 5"); A("s_add_u32 s29, s29, s30")
A("s_mul_i32 s30, s29, s26"); A("s_lshl_b32 s31, s27, 8"); A("s_add_u32 s30, s30, s31")
A("v_lshrrev_b32 v4, 4, v2"); A("v_lshlrev_b32 v4, 3, v4"); A("v_mul_lo_u32 v4, v4, s26")
A("v_and_b32 v5, 15, v2"); A("v_lshlrev_b32 v5, 4, v5"); A("v_add_u32 v4, v4, v5")
for e in range(8):
    A("buffer_load_dwordx4 v[%d:%d], v4, s[16:19], s30 offen" % (32 + 4 * e, 35 + 4 * e))
    if e < 7: A("s_add_u32 s30, s30, s26")
A("s_cmp_ge_u32 s2, 8"); A("s_cbranch_scc1 K1_nozero")
A("v_mov_b32 v64, 0"); A("v_mov_b32 v65, 0"); A("v_mov_b32 v66, 0"); A("v_mov_b32 v67, 0")
A("s_lshl_b32 s31, s2, 12"); A("s_add_u32 s31, s31, 0x%x" % SACC)
A("v_lshlrev_b32 v5, 4, v0")
A("buffer_store_dwordx4 v[64:67], v5, s[20:23], s31 offen")
lab("K1_nozero")
A("s_waitcnt vmcnt(8)")
A("s_waitcnt vmcnt(0)") if False else None
L.pop() if False else None
def ln_row(src, f, out_lds_off):
    for i in range(4):
        A("v_lshlrev_b32 v%d, 16, v%d" % (f + 2 * i, src + i))
        A("v_and_b32 v%d, 0xffff0000, v%d" % (f + 2 * i + 1, src + i))
    A("v_add_f32 v90, v%d, v%d" % (f, f + 1))
    for i in range(2, 8): A("v_add_f32 v90, v90, v%d" % (f + i))
    nop(1)
    wave_sum_all(90, 40)
    A("v_mul_f32 v90, 0x3b000000, v90")
    A("v_mov_b32 v91, 0")
    for i in range(8):
        A("v_sub_f32 v92, v%d, v90" % (f + i)); A("v_fmac_f32 v91, v92, v92")
    nop(1)
    wave_sum_all(91, 40)
    A("v_mul_f32 v91, 0x3b000000, v91")
    bf16r(90, 90); bf16r(91, 91)
    A("v_add_f32 v91, 0x3727c5ac, v91")
    bf16r(91, 91)
    A("v_sqrt_f32 v91, v91"); nop(0)
    bf16r(91, 91)
    A("v_rcp_f32 v93, v91"); nop(0)
    A("v_fma_f32 v94, -v91, v93, 1.0"); A("v_fma_f32 v93, v94, v93, v93")
    for i in range(8):
        A("v_sub_f32 v92, v%d, v90" % (f + i)); bf16r(92, 92)
        A("v_mul_f32 v95, v92, v93")
        A("v_fma_f32 v96, -v95, v91, v92"); A("v_fma_f32 v%d, v96, v93, v95" % (f + i))
    for i in range(4):
        A("v_cvt_pk_bf16_f32 v%d, v%d, v%d" % (src + i, f + 2 * i, f + 2 * i + 1))
    nop(0)
    A("ds_write_b128 v97, v[%d:%d] offset:%d" % (src, src + 3, out_lds_off))
A("v_lshlrev_b32 v97, 4, v2"); A("v_mov_b32 v98, s24"); A("v_add_u32 v97, v97, v98")
A("s_waitcnt vmcnt(8)")
A("s_cmp_ge_u32 s2, 8"); A("s_cbranch_scc1 K1_w_ok"); A("s_waitcnt vmcnt(9)"); lab("K1_w_ok")
ln_row(8, 72, 0)
ln_row(12, 80, 1024)
A("s_waitcnt lgkmcnt(0)"); A("s_barrier")
A("v_and_b32 v5, 7, v2"); A("v_lshlrev_b32 v5, 10, v5")
A("v_lshrrev_b32 v6, 4, v2"); A("v_lshlrev_b32 v6, 4, v6"); A("v_add_u32 v5, v5, v6")
A("s_lshl_b32 s31, s29, 1"); A("v_add_u32 v5, s31, v5")
A("ds_read_b128 v[8:11], v5")
A("s_mov_b32 s32, 0x05040100"); A("s_mov_b32 s33, 0x07060302")
A("s_waitcnt vmcnt(0) lgkmcnt(0)")
matmul_wave(32, 64, 96, 8, 32, 33)
A("v_lshrrev_b32 v5, 4, v2"); A("v_lshlrev_b32 v5, 11, v5")
A("v_and_b32 v6, 15, v2"); A("v_lshlrev_b32 v6, 5, v6"); A("v_add_u32 v5, v5, v6")
A("s_lshl_b32 s31, s3, 12"); A("s_add_u32 s31, s31, 8192"); A("v_add_u32 v5, s31, v5")
A("v_cmp_gt_u32 vcc, 32, v2"); A("s_and_saveexec_b64 s[34:35], vcc")
for c in range(8):
    for r in range(4):
        A("ds_write_b32 v5, v%d offset:%d" % (96 + 4 * c + r, r * 512 + c * 4))
A("s_mov_b64 exec, s[34:35]")
A("s_waitcnt lgkmcnt(0)"); A("s_barrier")
A("v_lshlrev_b32 v5, 4, v0")
for w in range(4): A("ds_read_b128 v[%d:%d], v5 offset:%d" % (8 + 4 * w, 11 + 4 * w, 8192 + 4096 * w))
A("s_waitcnt lgkmcnt(0)")
for i in range(4):
    A("v_add_f32 v%d, v%d, v%d" % (8 + i, 8 + i, 12 + i)); A("v_add_f32 v%d, v%d, v%d" % (16 + i, 16 + i, 20 + i)); A("v_add_f32 v%d, v%d, v%d" % (8 + i, 8 + i, 16 + i))
A("s_cmp_ge_u32 s2, 128"); A("s_cbranch_scc1 K1_hst")
A("s_mov_b32 s36, 16384"); A("s_mov_b32 s37, 0x%x" % QP); A("s_branch K1_st")
lab("K1_hst")
A("s_mov_b32 s36, 7168"); A("s_mov_b32 s37, 0x%x" % HP)
lab("K1_st")
A("s_lshl_b32 s38, s36, 3"); A("s_mul_i32 s38, s38, s28"); A("s_add_u32 s37, s37, s38")
A("s_lshl_b32 s38, s27, 9"); A("s_add_u32 s37, s37, s38")
A("v_lshrrev_b32 v5, 5, v0"); A("v_mul_lo_u32 v5, v5, s36")
A("v_and_b32 v6, 31, v0"); A("v_lshlrev_b32 v6, 4, v6"); A("v_add_u32 v5, v5, v6")
A("buffer_store_dwordx4 v[8:11], v5, s[20:23], s37 offen")
lab("K1_done")
A("s_endpgm")
kernel_desc(K1, 128)

K2 = NAME + "_k2_kernel"
W = 24
VW = 100
VS = 32
VQ = 16
VP = 64
VACC = 200
VPK = 232
kernel_begin(K2)
A("s_cmp_ge_u32 s2, 512"); A("s_cbranch_scc1 K2_done")
A("s_load_dwordx2 s[4:5], s[0:1], 8")
A("s_load_dwordx2 s[6:7], s[0:1], 16")
A("s_load_dwordx2 s[8:9], s[0:1], 96")
A("v_lshrrev_b32 v1, 6, v0"); A("v_and_b32 v2, 63, v0"); nop(0)
A("v_readfirstlane_b32 s3, v1")
A("s_waitcnt lgkmcnt(0)")
srd(12, 4, 5, 0x4000000); srd(16, 6, 7, 0x4000000); srd(20, 8, 9, WS_BYTES)
A("s_lshr_b32 s24, s2, 3"); A("s_and_b32 s25, s2, 7")
A("s_lshl_b32 s26, s24, 20"); A("s_lshl_b32 s27, s25, 17"); A("s_add_u32 s26, s26, s27")
A("s_lshl_b32 s27, s3, 15"); A("s_add_u32 s26, s26, s27")
A("s_lshr_b32 s28, s24, 3"); A("s_and_b32 s29, s24, 7")
A("s_lshl_b32 s30, s28, 14"); A("s_lshl_b32 s31, s29, 11"); A("s_add_u32 s30, s30, s31")
A("v_lshlrev_b32 v3, 3, v0")
for ks in range(4):
    A("buffer_load_dwordx2 v[%d:%d], v3, s[20:23], s30 offen" % (4 + 2 * ks, 5 + 2 * ks))
    if ks < 3: A("s_add_u32 s30, s30, 131072")
A("v_and_b32 v12, 15, v2"); A("v_lshrrev_b32 v13, 4, v2")
A("v_lshlrev_b32 v14, 8, v12"); A("v_lshl_add_u32 v14, v13, 4, v14")
A("s_mul_i32 s45, s3, 4352"); A("s_add_u32 s45, s45, 10240")
A("v_mul_u32_u24 v96, 272, v13"); A("v_lshl_add_u32 v96, v12, 4, v96"); A("v_add_u32 v96, s45, v96")
A("v_mul_u32_u24 v97, 272, v12"); A("v_lshl_add_u32 v97, v13, 4, v97"); A("v_add_u32 v97, s45, v97")
A("v_lshlrev_b32 v15, 10, v13"); A("v_lshl_add_u32 v15, v12, 4, v15")
A("s_mov_b32 s32, s26")
A("s_mov_b32 s33, s26"); A("s_add_u32 s34, s26, 4096")
loads = [("K", t, i) for t in range(8) for i in range(4)] + [("V", g, e) for g in range(4) for e in range(8)]
def issue(j):
    kind, a, b = loads[j]
    r = VW + 4 * (j % W)
    if kind == "K":
        A("buffer_load_dwordx4 v[%d:%d], v14, s[12:15], s32 offen offset:%d" % (r, r + 3, 64 * b))
        if b == 3: A("s_add_u32 s32, s32, 4096")
    else:
        A("buffer_load_dwordx4 v[%d:%d], v15, s[16:19], s%d offen offset:%d" % (r, r + 3, 33 if b < 4 else 34, 256 * (b & 3)))
        if b == 7: A("s_add_u32 s33, s33, 8192"); A("s_add_u32 s34, s34, 8192")
for j in range(W): issue(j)
nissued = W
A("s_waitcnt vmcnt(%d)" % W)
A("v_add_f32 v4, v4, v6"); A("v_add_f32 v5, v5, v7"); A("v_add_f32 v8, v8, v10"); A("v_add_f32 v9, v9, v11")
A("v_add_f32 v4, v4, v8"); A("v_add_f32 v5, v5, v9")
A("v_cvt_pk_bf16_f32 v4, v4, v5"); A("v_lshlrev_b32 v5, 2, v0")
A("ds_write_b32 v5, v4")
for i in range(16): A("v_mov_b32 v%d, 0" % (VQ + i))
A("v_lshlrev_b32 v5, 8, v12"); A("v_lshl_add_u32 v5, v13, 4, v5")
A("s_waitcnt lgkmcnt(0)"); A("s_barrier")
A("v_cmp_gt_u32 vcc, 4, v12"); A("s_and_saveexec_b64 s[36:37], vcc")
for i in range(4): A("ds_read_b128 v[%d:%d], v5 offset:%d" % (VQ + 4 * i, VQ + 4 * i + 3, 64 * i))
A("s_mov_b64 exec, s[36:37]")
A("s_waitcnt lgkmcnt(0)")
consumed = 0
for t in range(8):
    consumed += 4
    A("s_waitcnt vmcnt(%d)" % (nissued - consumed))
    for i in range(4):
        r = VW + 4 * ((4 * t + i) % W)
        A("v_mfma_f32_16x16x32_bf16 v[%d:%d], v[%d:%d], v[%d:%d], %s" % (VS + 4 * t, VS + 4 * t + 3, r, r + 3, VQ + 4 * i, VQ + 4 * i + 3, "0" if i == 0 else "v[%d:%d]" % (VS + 4 * t, VS + 4 * t + 3)))
    for _ in range(4):
        if nissued < len(loads): issue(nissued); nissued += 1
nop(7); nop(1)
A("s_mov_b32 s38, 0x3db504f3")
for i in range(0, 32, 2):
    a, b = VS + i, VS + i + 1
    A("v_cvt_pk_bf16_f32 v4, v%d, v%d" % (a, b))
    A("v_lshlrev_b32 v%d, 16, v4" % a); A("v_and_b32 v%d, 0xffff0000, v4" % b)
    A("v_mul_f32 v%d, s38, v%d" % (a, a)); A("v_mul_f32 v%d, s38, v%d" % (b, b))
    A("v_cvt_pk_bf16_f32 v4, v%d, v%d" % (a, b))
    A("v_lshlrev_b32 v%d, 16, v4" % a); A("v_and_b32 v%d, 0xffff0000, v4" % b)
A("v_max_f32 v4, v%d, v%d" % (VS, VS + 1))
for i in range(2, 32, 2): A("v_max3_f32 v4, v4, v%d, v%d" % (VS + i, VS + i + 1))
A("v_xor_b32 v5, 16, v2"); A("v_lshlrev_b32 v5, 2, v5"); A("v_xor_b32 v6, 32, v2"); A("v_lshlrev_b32 v6, 2, v6")
A("ds_bpermute_b32 v7, v5, v4"); A("s_waitcnt lgkmcnt(0)"); A("v_max_f32 v4, v4, v7")
A("ds_bpermute_b32 v7, v6, v4"); A("s_waitcnt lgkmcnt(0)"); A("v_max_f32 v4, v4, v7")
A("v_mov_b32 v8, 0")
for i in range(32):
    A("v_sub_f32 v%d, v%d, v4" % (VS + i, VS + i)); A("v_mul_f32 v%d, 0x%x, v%d" % (VS + i, LOG2E, VS + i))
    A("v_exp_f32 v%d, v%d" % (VS + i, VS + i)); nop(0)
    A("v_add_f32 v8, v8, v%d" % (VS + i))
for i in range(16): A("v_cvt_pk_bf16_f32 v%d, v%d, v%d" % (VPK + i, VS + 2 * i, VS + 2 * i + 1))
A("ds_bpermute_b32 v7, v5, v8"); A("s_waitcnt lgkmcnt(0)"); A("v_add_f32 v8, v8, v7")
A("ds_bpermute_b32 v7, v6, v8"); A("s_waitcnt lgkmcnt(0)"); A("v_add_f32 v8, v8, v7")
A("s_mov_b32 s40, 0x05040100"); A("s_mov_b32 s41, 0x07060302")
for g in range(4):
    consumed += 8
    A("s_waitcnt vmcnt(%d)" % (nissued - consumed))
    base = 32 + 8 * g
    for c in range(8):
        for m in range(4):
            r0 = VW + 4 * ((base + 2 * m) % W) + c // 2; r1 = VW + 4 * ((base + 2 * m + 1) % W) + c // 2
            A("v_perm_b32 v%d, v%d, v%d, s%d" % (VP + 4 * c + m, r1, r0, 40 if c % 2 == 0 else 41))
    for _ in range(8):
        if nissued < len(loads): issue(nissued); nissued += 1
    nop(1)
    for c in range(8):
        A("v_mfma_f32_16x16x32_bf16 v[%d:%d], v[%d:%d], v[%d:%d], %s" % (VACC + 4 * c, VACC + 4 * c + 3, VPK + 4 * g, VPK + 4 * g + 3, VP + 4 * c, VP + 4 * c + 3, "0" if g == 0 else "v[%d:%d]" % (VACC + 4 * c, VACC + 4 * c + 3)))
    nop(3)
nop(7); nop(1)
A("s_lshl_b32 s42, s3, 11"); A("s_add_u32 s42, s42, 1024")
A("v_lshlrev_b32 v9, 5, v2"); A("v_add_u32 v9, s42, v9")
A("v_cmp_gt_u32 vcc, 16, v2"); A("s_and_saveexec_b64 s[36:37], vcc")
for c in range(8):
    for r in range(4):
        A("ds_write_b32 v9, v%d offset:%d" % (VACC + 4 * c + r, r * 512 + c * 4))
A("s_mov_b64 exec, s[36:37]")
A("s_lshl_b32 s42, s3, 4"); A("s_add_u32 s42, s42, 9216")
A("v_lshlrev_b32 v9, 2, v2"); A("v_add_u32 v9, s42, v9")
A("v_cmp_gt_u32 vcc, 4, v2"); A("s_and_saveexec_b64 s[36:37], vcc")
A("ds_write_b32 v9, v4"); A("ds_write_b32 v9, v8 offset:64")
A("s_mov_b64 exec, s[36:37]")
A("s_waitcnt lgkmcnt(0)"); A("s_barrier")
A("v_lshlrev_b32 v9, 2, v1")
for w in range(4):
    A("ds_read_b32 v%d, v9 offset:%d" % (20 + w, 9216 + 16 * w)); A("ds_read_b32 v%d, v9 offset:%d" % (24 + w, 9280 + 16 * w))
A("v_lshlrev_b32 v10, 9, v1"); A("v_lshl_add_u32 v10, v2, 3, v10")
for w in range(4): A("ds_read_b64 v[%d:%d], v10 offset:%d" % (28 + 2 * w, 29 + 2 * w, 1024 + 2048 * w))
A("s_waitcnt lgkmcnt(0)")
A("v_max_f32 v4, v20, v21"); A("v_max3_f32 v4, v4, v22, v23")
A("v_mov_b32 v8, 0"); A("v_mov_b32 v16, 0"); A("v_mov_b32 v17, 0")
for w in range(4):
    A("v_sub_f32 v11, v%d, v4" % (20 + w)); A("v_mul_f32 v11, 0x%x, v11" % LOG2E); A("v_exp_f32 v11, v11"); nop(0)
    A("v_fmac_f32 v8, v11, v%d" % (24 + w)); A("v_fmac_f32 v16, v11, v%d" % (28 + 2 * w)); A("v_fmac_f32 v17, v11, v%d" % (29 + 2 * w))
A("s_lshl_b32 s42, s2, 11"); A("s_add_u32 s42, s42, 0x%x" % OP)
A("buffer_store_dwordx2 v[16:17], v3, s[20:23], s42 offen")
A("v_mov_b32 v5, v8")
A("s_lshl_b32 s42, s2, 5"); A("s_add_u32 s42, s42, 0x%x" % ML)
A("v_lshlrev_b32 v9, 3, v1")
A("v_cmp_eq_u32 vcc, 0, v2"); A("s_and_saveexec_b64 s[36:37], vcc")
A("buffer_store_dwordx2 v[4:5], v9, s[20:23], s42 offen")
A("s_mov_b64 exec, s[36:37]")
lab("K2_done")
A("s_endpgm")
kernel_desc(K2, 248)

K3 = NAME + "_k3_kernel"
kernel_begin(K3)
A("s_cmp_ge_u32 s2, 184"); A("s_cbranch_scc1 K3_done")
A("s_load_dwordx2 s[4:5], s[0:1], 32")
A("s_load_dwordx2 s[6:7], s[0:1], 64")
A("s_load_dwordx2 s[10:11], s[0:1], 56")
A("s_load_dwordx2 s[8:9], s[0:1], 96")
A("v_lshrrev_b32 v1, 6, v0"); A("v_and_b32 v2, 63, v0"); nop(0)
A("v_readfirstlane_b32 s3, v1")
A("s_waitcnt lgkmcnt(0)")
srd(20, 8, 9, WS_BYTES)
A("s_cmp_ge_u32 s2, 128"); A("s_cbranch_scc1 K3_fsel")
srd(16, 4, 5, 4096 * 512 * 2); A("s_mov_b32 s25, s2"); A("s_mov_b32 s44, 0x%x" % SACC)
A("s_branch K3_sel_done")
lab("K3_fsel")
srd(16, 6, 7, 1792 * 512 * 2); A("s_sub_u32 s25, s2, 128"); A("s_mov_b32 s44, 0x%x" % GACC)
lab("K3_sel_done")
A("s_lshr_b32 s27, s25, 2"); A("s_and_b32 s28, s25, 3")
A("s_lshl_b32 s29, s27, 7"); A("s_lshl_b32 s30, s3, 5"); A("s_add_u32 s29, s29, s30")
A("s_lshl_b32 s30, s29, 10"); A("s_lshl_b32 s31, s28, 8"); A("s_add_u32 s30, s30, s31")
A("v_lshrrev_b32 v4, 4, v2"); A("v_lshlrev_b32 v4, 13, v4")
A("v_and_b32 v5, 15, v2"); A("v_lshlrev_b32 v5, 4, v5"); A("v_add_u32 v4, v4, v5")
for e in range(8):
    A("buffer_load_dwordx4 v[%d:%d], v4, s[16:19], s30 offen" % (32 + 4 * e, 35 + 4 * e))
    if e < 7: A("s_add_u32 s30, s30, 1024")
A("v_lshrrev_b32 v6, 5, v0"); A("v_and_b32 v7, 31, v0")
A("s_cmp_ge_u32 s2, 128"); A("s_cbranch_scc1 K3_fpre")
A("s_lshr_b32 s31, s27, 2"); A("s_and_b32 s32, s27, 3")
A("s_lshl_b32 s33, s31, 14"); A("s_lshl_b32 s34, s32, 9"); A("s_add_u32 s33, s33, s34"); A("s_add_u32 s33, s33, 0x%x" % OP)
A("v_lshlrev_b32 v8, 17, v6"); A("v_lshl_add_u32 v8, v7, 4, v8")
for s in range(8): A("buffer_load_dwordx4 v[%d:%d], v8, s[20:23], s33 offen offset:%d" % (96 + 4 * s, 99 + 4 * s, 2048 * s) if s < 2 else "s_nop 0")
L[:] = [x for x in L]
for s in range(2, 8):
    pass
A("s_add_u32 s34, s33, 4096")
for s in range(2, 8):
    if s % 2 == 0 and s > 2: A("s_add_u32 s34, s34, 4096")
    A("buffer_load_dwordx4 v[%d:%d], v8, s[20:23], s34 offen offset:%d" % (96 + 4 * s, 99 + 4 * s, 2048 * (s % 2)))
A("s_lshl_b32 s33, s31, 8"); A("s_lshl_b32 s34, s32, 3"); A("s_add_u32 s33, s33, s34"); A("s_add_u32 s33, s33, 0x%x" % ML)
A("v_lshlrev_b32 v9, 11, v6")
for s in range(8): A("buffer_load_dwordx2 v[%d:%d], v9, s[20:23], s33 offen offset:%d" % (128 + 2 * s, 129 + 2 * s, 32 * s))
A("s_waitcnt vmcnt(0)")
A("v_max_f32 v10, v128, v130")
for s in range(2, 8, 2): A("v_max3_f32 v10, v10, v%d, v%d" % (128 + 2 * s, 130 + 2 * s))
A("v_mov_b32 v11, 0")
for i in range(4): A("v_mov_b32 v%d, 0" % (12 + i))
for s in range(8):
    A("v_sub_f32 v16, v%d, v10" % (128 + 2 * s)); A("v_mul_f32 v16, 0x%x, v16" % LOG2E); A("v_exp_f32 v16, v16"); nop(0)
    A("v_fmac_f32 v11, v16, v%d" % (129 + 2 * s))
    for i in range(4): A("v_fmac_f32 v%d, v16, v%d" % (12 + i, 96 + 4 * s + i))
A("v_rcp_f32 v16, v11"); nop(0)
A("v_fma_f32 v17, -v11, v16, 1.0"); A("v_fma_f32 v16, v17, v16, v16")
for i in range(4): A("v_mul_f32 v%d, v%d, v16" % (12 + i, 12 + i))
A("s_branch K3_pre_done")
lab("K3_fpre")
srd(12, 10, 11, 3584)
A("s_mov_b32 s36, 7168"); A("v_mul_lo_u32 v8, v6, s36"); A("v_lshl_add_u32 v8, v7, 4, v8")
A("s_lshl_b32 s33, s27, 9"); A("s_add_u32 s33, s33, 0x%x" % HP)
for ks in range(4):
    A("buffer_load_dwordx4 v[%d:%d], v8, s[20:23], s33 offen" % (96 + 4 * ks, 99 + 4 * ks))
    if ks < 3: A("s_add_u32 s33, s33, 57344")
A("v_lshlrev_b32 v9, 3, v7"); A("s_lshl_b32 s33, s27, 8")
A("buffer_load_dwordx2 v[112:113], v9, s[12:15], s33 offen")
A("s_waitcnt vmcnt(0)")
A("v_lshlrev_b32 v114, 16, v112"); A("v_and_b32 v115, 0xffff0000, v112"); A("v_lshlrev_b32 v116, 16, v113"); A("v_and_b32 v117, 0xffff0000, v113")
for i in range(4):
    A("v_add_f32 v%d, v%d, v%d" % (96 + i, 96 + i, 100 + i)); A("v_add_f32 v%d, v%d, v%d" % (104 + i, 104 + i, 108 + i)); A("v_add_f32 v%d, v%d, v%d" % (12 + i, 96 + i, 104 + i))
    bf16r(12 + i, 12 + i)
    A("v_add_f32 v%d, v%d, v%d" % (12 + i, 12 + i, 114 + i)); bf16r(12 + i, 12 + i)
    x = 12 + i
    A("v_mul_f32 v16, v%d, v%d" % (x, x)); A("v_mul_f32 v16, v16, v%d" % x)
    A("v_mov_b32 v17, 0x3d372713"); A("v_fma_f32 v16, v16, v17, v%d" % x)
    A("v_mul_f32 v16, 0x3f4c422a, v16")
    A("v_mul_f32 v16, 0x4038aa3b, v16")
    A("v_exp_f32 v16, v16"); nop(0)
    A("v_add_f32 v16, 1.0, v16"); A("v_rcp_f32 v16, v16"); nop(0)
    A("v_fma_f32 v16, v16, -2.0, 1.0")
    A("v_add_f32 v16, 1.0, v16"); A("v_mul_f32 v16, 0.5, v16"); A("v_mul_f32 v%d, v%d, v16" % (x, x))
lab("K3_pre_done")
A("v_cvt_pk_bf16_f32 v12, v12, v13"); A("v_cvt_pk_bf16_f32 v13, v14, v15")
A("v_lshlrev_b32 v8, 8, v6"); A("v_lshl_add_u32 v8, v7, 3, v8")
A("ds_write_b64 v8, v[12:13]")
A("s_waitcnt lgkmcnt(0)"); A("s_barrier")
A("v_and_b32 v5, 7, v2"); A("v_lshlrev_b32 v5, 8, v5")
A("v_lshrrev_b32 v8, 4, v2"); A("v_lshlrev_b32 v8, 4, v8"); A("v_add_u32 v5, v5, v8")
A("s_lshl_b32 s31, s3, 6"); A("v_add_u32 v5, s31, v5")
A("ds_read_b128 v[8:11], v5")
A("s_mov_b32 s32, 0x05040100"); A("s_mov_b32 s33, 0x07060302")
A("s_waitcnt vmcnt(0) lgkmcnt(0)")
matmul_wave(32, 64, 96, 8, 32, 33)
A("v_lshrrev_b32 v5, 4, v2"); A("v_lshlrev_b32 v5, 11, v5")
A("v_and_b32 v8, 15, v2"); A("v_lshlrev_b32 v8, 5, v8"); A("v_add_u32 v5, v5, v8")
A("s_lshl_b32 s31, s3, 12"); A("s_add_u32 s31, s31, 8192"); A("v_add_u32 v5, s31, v5")
A("v_cmp_gt_u32 vcc, 32, v2"); A("s_and_saveexec_b64 s[34:35], vcc")
for c in range(8):
    for r in range(4):
        A("ds_write_b32 v5, v%d offset:%d" % (96 + 4 * c + r, r * 512 + c * 4))
A("s_mov_b64 exec, s[34:35]")
A("s_waitcnt lgkmcnt(0)"); A("s_barrier")
A("v_lshlrev_b32 v5, 2, v0")
for q in range(4):
    for w in range(4): A("ds_read_b32 v%d, v5 offset:%d" % (16 + 4 * q + w, 8192 + 4096 * w + 1024 * q))
A("s_waitcnt lgkmcnt(0)")
A("v_lshrrev_b32 v8, 7, v0"); A("v_lshlrev_b32 v8, 11, v8"); A("v_and_b32 v9, 127, v0"); A("v_lshl_add_u32 v8, v9, 2, v8")
A("s_lshl_b32 s31, s28, 9"); A("s_add_u32 s31, s31, s44")
for q in range(4):
    b = 16 + 4 * q
    A("v_add_f32 v%d, v%d, v%d" % (b, b, b + 1)); A("v_add_f32 v%d, v%d, v%d" % (b + 2, b + 2, b + 3)); A("v_add_f32 v%d, v%d, v%d" % (b, b, b + 2))
    A("buffer_atomic_add_f32 v%d, v8, s[20:23], s31 offen offset:%d" % (b, 0))
    if q < 3: A("s_add_u32 s31, s31, 4096")
lab("K3_done")
A("s_endpgm")
kernel_desc(K3, 144)

K4 = NAME + "_k4_kernel"
kernel_begin(K4)
A("s_cmp_ge_u32 s2, 16"); A("s_cbranch_scc1 K4_done")
A("s_load_dwordx2 s[4:5], s[0:1], 0")
A("s_load_dwordx2 s[6:7], s[0:1], 72")
A("s_load_dwordx2 s[10:11], s[0:1], 80")
A("s_load_dwordx2 s[8:9], s[0:1], 96")
A("s_waitcnt lgkmcnt(0)")
srd(12, 4, 5, 8192); srd(16, 6, 7, 1024); srd(20, 8, 9, WS_BYTES); srd(24, 10, 11, 8192)
A("s_lshl_b32 s3, s2, 8"); A("v_add_u32 v1, s3, v0")
A("v_lshlrev_b32 v2, 1, v1"); A("v_lshlrev_b32 v3, 2, v1"); A("v_and_b32 v4, 511, v1"); A("v_lshlrev_b32 v4, 1, v4")
A("buffer_load_ushort v5, v2, s[12:15], 0 offen")
A("buffer_load_ushort v6, v4, s[16:19], 0 offen")
A("s_mov_b32 s28, 0x%x" % SACC); A("s_mov_b32 s29, 0x%x" % GACC)
A("buffer_load_dword v7, v3, s[20:23], s28 offen")
A("buffer_load_dword v8, v3, s[20:23], s29 offen")
A("s_waitcnt vmcnt(0)")
A("v_lshlrev_b32 v5, 16, v5"); A("v_lshlrev_b32 v6, 16, v6")
bf16r(7, 7); bf16r(8, 8)
A("v_add_f32 v8, v8, v6"); bf16r(8, 8)
A("v_mul_f32 v9, 0xbfb8aa3b, v8"); A("v_exp_f32 v9, v9"); nop(0)
A("v_add_f32 v9, 1.0, v9"); A("v_rcp_f32 v10, v9"); nop(0)
A("v_fma_f32 v11, -v9, v10, 1.0"); A("v_fma_f32 v10, v11, v10, v10")
A("v_mul_f32 v8, v8, v10"); bf16r(8, 8)
A("v_mul_f32 v7, v7, v8"); bf16r(7, 7)
A("v_add_f32 v5, v5, v7")
A("v_cvt_pk_bf16_f32 v5, v5, v5")
A("buffer_store_short v5, v2, s[24:27], 0 offen")
lab("K4_done")
A("s_endpgm")
kernel_desc(K4, 32)

L = [x for x in L if x is not None]
launch = """; @launch kernel=%s grid=(184,1,1) block=(256,1,1) lds=24576
; @launch kernel=%s grid=(512,1,1) block=(256,1,1) lds=9472
; @launch kernel=%s grid=(184,1,1) block=(256,1,1) lds=24576
; @launch kernel=%s grid=(16,1,1) block=(256,1,1) lds=0
""" % (K1, K2, K3, K4)
txt = HEADER + launch + '.amdgcn_target "amdgcn-amd-amdhsa--gfx950"\n.text\n' + "\n".join(L) + '\n.section .rodata,"a"\n.p2align 6\n' + "\n.p2align 6\n".join(KD) + "\n"
open(OUT, "w").write(txt)
print("wrote", OUT, len(txt))
```
